```python
import torch

def _softmax(x, axis=-1):
    return torch.softmax(x, dim=axis)
def _gelu(x):
    return torch.nn.functional.gelu(x, approximate="tanh")
def _silu(x):
    return torch.nn.functional.silu(x)
def _sigmoid(x):
    return torch.sigmoid(x)
def _layernorm(x, axis=-1, eps=1e-5):
    m = x.mean(dim=axis, keepdim=True)
    v = x.var(dim=axis, keepdim=True, unbiased=False)
    return (x - m) / torch.sqrt(v + eps)
def _scatter_add(tgt, idx, src, axis=0):
    return tgt.clone().index_add_(axis, idx, src)
def _segment_sum(src, seg, n):
    out = torch.zeros((n,) + src.shape[1:], dtype=src.dtype)
    return out.index_add_(0, seg, src)
def _pad(x, pw):
    flat = tuple(v for pair in reversed(pw) for v in pair)
    return torch.nn.functional.pad(x, flat)

kernel_name = 'parallel_sum__ssm_conv_s5__geglu_ffn__prompt'

def setup_inputs():

    _w = (lambda a: (lambda t: t.to(torch.bfloat16) if t.is_floating_point() else t)(torch.as_tensor(a)))
    def _A_setup():
        B, S, D = 1, 2048, 1024
        P = D
        Lambda_re = -0.5 * (lambda _x: torch.exp(torch.as_tensor(_x)))((lambda *s: torch.randn(*s, dtype=torch.bfloat16) * 0.8)(P))
        Lambda_im = (lambda *s: torch.randn(*s, dtype=torch.bfloat16) * 0.8)(P) * 1.0
        B_re = (lambda *s: torch.randn(*s, dtype=torch.bfloat16) * 1.6)(P, D) * (D ** -0.5)
        B_im = (lambda *s: torch.randn(*s, dtype=torch.bfloat16) * 1.6)(P, D) * (D ** -0.5)
        C_re = (lambda *s: torch.randn(*s, dtype=torch.bfloat16) * 1.6)(D, P) * (P ** -0.5)
        C_im = (lambda *s: torch.randn(*s, dtype=torch.bfloat16) * 1.6)(D, P) * (P ** -0.5)
        log_dt = (lambda *s: torch.randn(*s, dtype=torch.bfloat16) * 0.8)(P) * 0.3 - 2.0
        Dskip = (lambda *s: torch.randn(*s, dtype=torch.bfloat16) * 0.4)(D)
        return {
            "x": _w((lambda *s: torch.randn(*s, dtype=torch.bfloat16) * 0.05)(B, S, D)),
            "Lambda_re": _w(Lambda_re),
            "Lambda_im": _w(Lambda_im),
            "B_re": _w(B_re),
            "B_im": _w(B_im),
            "C_re": _w(C_re),
            "C_im": _w(C_im),
            "log_dt": _w(log_dt),
            "Dskip": _w(Dskip),
        }
    _A_in = _A_setup()

    def _B_setup():
        B, S, D, F = 1, 2048, 1024, 3584
        return {
            "x": _w((lambda *s: torch.randn(*s, dtype=torch.bfloat16) * 0.05)(B, S, D)),
            "w_gate": _w((lambda *s: torch.randn(*s, dtype=torch.bfloat16) * 0.05)(D, F)),
            "w_up": _w((lambda *s: torch.randn(*s, dtype=torch.bfloat16) * 0.05)(D, F)),
            "w_down": _w((lambda *s: torch.randn(*s, dtype=torch.bfloat16) * 0.05)(F, D)),
        }
    _B_in = _B_setup()

    return {
        "A_x": _A_in["x"],
        "A_Lambda_re": _A_in["Lambda_re"],
        "A_Lambda_im": _A_in["Lambda_im"],
        "A_B_re": _A_in["B_re"],
        "A_B_im": _A_in["B_im"],
        "A_C_re": _A_in["C_re"],
        "A_C_im": _A_in["C_im"],
        "A_log_dt": _A_in["log_dt"],
        "A_Dskip": _A_in["Dskip"],
        "B_x": _B_in["x"],
        "B_w_gate": _B_in["w_gate"],
        "B_w_up": _B_in["w_up"],
        "B_w_down": _B_in["w_down"],
    }

def reference(A_x, A_Lambda_re, A_Lambda_im, A_B_re, A_B_im, A_C_re, A_C_im, A_log_dt, A_Dskip, B_x, B_w_gate, B_w_up, B_w_down):
    def _A_ref(x, Lambda_re, Lambda_im, B_re, B_im, C_re, C_im, log_dt, Dskip):
        Bsz, L, H = x.shape
        Lam = Lambda_re + 1j * Lambda_im
        Bmat = B_re + 1j * B_im
        Cmat = C_re + 1j * C_im
        dt = torch.exp(log_dt)
        Lam_bar = torch.exp(dt * Lam)
        B_bar = ((Lam_bar - 1.0) / Lam)[:, None] * Bmat
        Bu = torch.einsum("bld,pd->blp", x + 0j, B_bar)
        h = torch.zeros_like(Bu[:, 0, :])
        hs = []
        for t in range(L):
            h = Lam_bar[None, :] * h + Bu[:, t, :]
            hs.append(h)
        hseq = torch.stack(hs, 1)
        y = 2.0 * torch.einsum("blp,dp->bld", hseq, Cmat).real + x * Dskip[None, None, :]
        return y

    def _B_ref(x, w_gate, w_up, w_down):
        return (_gelu(x @ w_gate) * (x @ w_up)) @ w_down

    x = A_x
    xn = _layernorm(x, axis=-1)
    return x + _A_ref(xn, A_Lambda_re, A_Lambda_im, A_B_re, A_B_im, A_C_re, A_C_im, A_log_dt, A_Dskip) + _B_ref(xn, B_w_gate, B_w_up, B_w_down)
```

```python
NAME = "parallel_sum__ssm_conv_s5__geglu_ffn__prompt"
def header(launch_lines):
    return "\n".join(launch_lines) + '\n.amdgcn_target "amdgcn-amd-amdhsa--gfx950"\n.text\n'
def kstart(name):
    return f".globl {name}\n.p2align 8\n.type {name},@function\n{name}:\n"
def kdesc(name, vgpr, accum, sgpr=102):
    return f""".amdhsa_kernel {name}
  .amdhsa_next_free_vgpr {vgpr}
  .amdhsa_next_free_sgpr {sgpr}
  .amdhsa_accum_offset {accum}
  .amdhsa_group_segment_fixed_size 0
  .amdhsa_kernarg_size 128
  .amdhsa_user_sgpr_count 2
  .amdhsa_user_sgpr_kernarg_segment_ptr 1
  .amdhsa_system_sgpr_workgroup_id_x 1
.end_amdhsa_kernel
"""
RODATA = '.section .rodata,"a"\n.p2align 6\n'
```

```python
import re

REG_RE = re.compile(r'^(-?)(?:abs\()?\|?([vas])(?:(\d+)|\[(\d+):(\d+)\])\|?\)?$')

def regs_of(tok):
    tok = tok.strip()
    if tok in ('vcc', 'vcc_lo', 'vcc_hi'): return [('vcc', 0)]
    if tok in ('exec', 'exec_lo', 'exec_hi'): return [('exec', 0)]
    if tok == 'm0': return [('m0', 0)]
    m = REG_RE.match(tok)
    if not m: return []
    c = m.group(2)
    if m.group(3) is not None: return [(c, int(m.group(3)))]
    return [(c, i) for i in range(int(m.group(4)), int(m.group(5)) + 1)]

TRANS = ('v_exp_f32', 'v_log_f32', 'v_rcp_f32', 'v_rsq_f32', 'v_sqrt_f32', 'v_sin_f32', 'v_cos_f32', 'v_rcp_iflag_f32')

class I:
    __slots__ = ('t', 'op', 'defs', 'uses', 'kind', 'tag', 'need', 'w_vm', 'w_lg', 'nops', 'dpp', 'srcc', 'wide', 'data', 'ldsdma', 'nocount')
    def __init__(self, t, tag=None, need=None):
        self.t = t.strip(); self.tag = tag; self.need = need or []
        self.w_vm = None; self.w_lg = None; self.nops = 0
        self.defs = []; self.uses = []; self.dpp = False; self.srcc = []; self.wide = False; self.data = []; self.ldsdma = False; self.nocount = '; nocount' in t
        s = self.t.split(';')[0].strip()
        if not s or s.endswith(':') or s.startswith('.'):
            self.op = ''; self.kind = 'x'; return
        p = s.split(None, 1)
        op = p[0]; self.op = op
        rest = p[1] if len(p) > 1 else ''
        toks = [x.strip() for x in rest.split(',')] if rest else []
        rest2 = re.sub(r'\s+(op_sel|op_sel_hi|neg_lo|neg_hi|quad_perm):\[[^\]]*\]', '', rest)
        toks = [x.strip() for x in rest2.split(',')] if rest2 else []
        mods = ''
        if toks:
            q = toks[-1].split(None, 1)
            toks[-1] = q[0]
            mods = q[1] if len(q) > 1 else ''
        R = [regs_of(x) for x in toks]
        flat = lambda l: [r for x in l for r in x]
        if op.startswith('v_mfma'):
            self.kind = 'mfma'; self.defs = R[0]; self.uses = flat(R[1:]); self.srcc = R[3]
        elif op.startswith('ds_'):
            self.kind = 'ds'
            if op.startswith('ds_read') or 'permute' in op or op.startswith('ds_swizzle'):
                self.defs = R[0]; self.uses = flat(R[1:])
            else: self.uses = flat(R)
        elif op.startswith('buffer_') or op.startswith('global_'):
            self.kind = 'vm'
            full = rest2
            if op.startswith('buffer_wbl2') or op.startswith('buffer_inv'): pass
            elif re.search(r'\blds\b', mods) or op.startswith('global_load_lds'):
                self.uses = flat(R) + [('m0', 0)]; self.ldsdma = True
            elif '_load_' in op:
                self.defs = [] if '; nodef' in t else R[0]; self.uses = flat(R[1:])
            elif '_atomic_' in op and re.search(r'\bsc0\b', mods):
                self.defs = R[0]; self.uses = flat(R if op.startswith('buffer') else R[1:])
            else:
                self.uses = flat(R)
                if op.endswith('x4') or op.endswith('x3'):
                    self.wide = True; self.data = R[0] if op.startswith('buffer') else R[1]
        elif op.startswith('s_load') or op.startswith('s_memtime') or op.startswith('s_memrealtime'):
            self.kind = 'smem'; self.defs = R[0]; self.uses = flat(R[1:])
        elif op.startswith('s_'):
            self.kind = 's'
            if op.startswith('s_cmp') or op.startswith('s_cbranch') or op.startswith('s_bitcmp') or op in ('s_waitcnt', 's_nop', 's_barrier', 's_branch', 's_endpgm', 's_sleep', 's_setprio'):
                self.uses = flat(R)
                if op.startswith('s_cbranch_vcc'): self.uses = [('vcc', 0)]
            else:
                self.defs = R[0] if R else []; self.uses = flat(R[1:])
                if 'saveexec' in op: self.defs = self.defs + [('exec', 0)]; self.uses.append(('exec', 0))
                if op.startswith('s_addk') or op.startswith('s_mulk'): self.uses += R[0]
        elif op.startswith('v_'):
            self.kind = 'v'
            self.dpp = '_dpp' in op
            if 'swap' in op:
                self.defs = flat(R); self.uses = flat(R)
            elif op.startswith('v_add_co') or op.startswith('v_sub_co') or op.startswith('v_addc_co') or op.startswith('v_subb_co') or op.startswith('v_mad_u64'):
                self.defs = R[0] + R[1]; self.uses = flat(R[2:])
            else:
                self.defs = R[0]; self.uses = flat(R[1:])
                if op.startswith('v_fmac') or op.startswith('v_dot2c') or self.dpp or op.startswith('v_writelane'): self.uses = self.uses + R[0]
        else:
            raise ValueError('unknown instr ' + t)

def opbase(op):
    return re.sub(r'_(e32|e64|dpp|sdwa)$', '', op)

class Prog:
    def __init__(self):
        self.segs = []
        self.cur = None
    def seg(self, bases=(0,)):
        self.cur = []; self.segs.append((self.cur, list(bases))); return self.cur
    def e(self, text, tag=None, need=None):
        lines = [l for l in text.split('\n') if l.strip()]
        for k, l in enumerate(lines):
            self.cur.append(I(l, tag if k == len(lines) - 1 else None, need if k == 0 else None))
    def add(self, items):
        self.cur.extend(items)
    def dyn(self):
        for items, bases in self.segs:
            for b in bases:
                for it in items: yield it, b
    def resolve_waits(self):
        def sim(final):
            cnt = {'vm': 0, 'lg': 0}; done = {'vm': 0, 'lg': 0}
            pend = {}; tags = {}; smem_out = False
            for it, b in self.dyn():
                if it.kind == 'x': continue
                needs = []
                for r in it.uses + it.defs:
                    if r in pend: needs.append(pend[r])
                for (nm, rel) in it.need:
                    key = (nm, b + rel)
                    if key in tags: needs += tags[key]
                    else: raise ValueError(f'tag {key} never issued (needed by {it.t})')
                for c in ('vm', 'lg'):
                    idx = max([n[1] for n in needs if n[0] == c], default=0)
                    cur = it.w_vm if c == 'vm' else it.w_lg
                    if idx > done[c]:
                        N = min(cnt[c] - idx, 63 if c == 'vm' else 15)
                        if c == 'lg' and smem_out: N = 0
                        if cur is None or N < cur:
                            assert not final, it.t
                            cur = N
                            if c == 'vm': it.w_vm = N
                            else: it.w_lg = N
                    if cur is not None:
                        done[c] = max(done[c], cnt[c] - cur)
                        if c == 'lg' and cur == 0: smem_out = False
                if it.op == 's_waitcnt':
                    m = re.search(r'vmcnt\((\d+)\)', it.t)
                    if m: done['vm'] = max(done['vm'], cnt['vm'] - int(m.group(1)))
                    m = re.search(r'lgkmcnt\((\d+)\)', it.t)
                    if m:
                        if not smem_out or int(m.group(1)) == 0: done['lg'] = max(done['lg'], cnt['lg'] - int(m.group(1)))
                        if int(m.group(1)) == 0: smem_out = False
                c = {'vm': 'vm', 'ds': 'lg', 'smem': 'lg'}.get(it.kind)
                for r in it.defs: pend.pop(r, None)
                if c and not it.nocount:
                    cnt[c] += 1
                    if it.kind == 'smem': smem_out = True
                    for r in it.defs: pend[r] = (c, cnt[c])
                    if it.tag: tags.setdefault((it.tag[0], b + it.tag[1]), []).append((c, cnt[c]))
        sim(False); sim(False); sim(True)
    def resolve_hazards(self):
        changed = True
        while changed:
            changed = False
            hist = []
            pos = 0
            for it, b in self.dyn():
                if it.kind == 'x': continue
                pre = (1 if (it.w_vm is not None or it.w_lg is not None) else 0) + it.nops
                here = pos + pre
                req = 0
                U = set(it.uses); D = set(it.defs)
                ob = opbase(it.op)
                for (p, ppos) in reversed(hist):
                    dist = here - ppos - 1
                    if dist >= 20: break
                    need = 0
                    PD = set(p.defs)
                    if p.kind == 'v':
                        vd = {r for r in PD if r[0] in 'va'}
                        sd = {r for r in PD if r[0] in ('s', 'vcc')}
                        if it.kind == 'mfma' and vd & U: need = max(need, 2)
                        if it.kind == 'v' and vd & U:
                            if it.dpp or 'permlane' in it.op: need = max(need, 2)
                            if ob in ('v_readfirstlane_b32', 'v_readlane_b32'): need = max(need, 1)
                            if opbase(p.op) in TRANS: need = max(need, 1)
                        if sd & U:
                            if it.kind == 'v': need = max(need, 4 if 'lane_b32' in it.op else 2)
                            if it.kind == 'vm': need = max(need, 5)
                            if it.kind in ('s', 'smem'): need = max(need, 2)
                        if it.kind == 'v' and ('vcc', 0) in sd and it.op.startswith('v_cndmask') and len(it.t.split(',')) == 3: need = max(need, 2)
                    if p.kind == 'mfma':
                        x8 = 4 if '32x32' in p.op else 0
                        if it.kind == 'mfma':
                            ab = set(it.uses) - set(it.srcc)
                            if PD & ab: need = max(need, 8 + x8)
                            if PD & set(it.srcc) and PD != set(it.srcc): need = max(need, 6 + x8)
                        elif it.kind in ('v', 'vm', 'ds'):
                            if PD & (U | D): need = max(need, 8 + x8)
                            if it.kind == 'v' and set(p.srcc) & D: need = max(need, 3 + x8)
                    if p.kind == 's' and ('m0', 0) in PD and it.ldsdma: need = max(need, 1)
                    if p.kind == 'vm' and p.wide and set(p.data) & D: need = max(need, 2)
                    if need > dist: req = max(req, need - dist)
                if req > 0:
                    it.nops += req; changed = True; here += req
                w = 1
                if it.op == 's_nop': w = int(it.t.split()[1], 0) + 1
                hist.append((it, here + w - 1)); pos = here + w
                if len(hist) > 24: hist.pop(0)
    def text(self):
        self.resolve_waits(); self.resolve_hazards()
        out = []
        for items, _ in self.segs:
            for it in items:
                n = it.nops
                while n > 0:
                    k = min(n, 16); out.append(f'  s_nop {k-1}'); n -= k
                w = []
                if it.w_vm is not None: w.append(f'vmcnt({it.w_vm})')
                if it.w_lg is not None: w.append(f'lgkmcnt({it.w_lg})')
                if w: out.append('  s_waitcnt ' + ' '.join(w))
                out.append(it.t if it.kind == 'x' else '  ' + it.t)
        return '\n'.join(out) + '\n'

def vr(c, b, n=1):
    return f'{c}{b}' if n == 1 else f'{c}[{b}:{b+n-1}]'


class Stream:
    def __init__(self):
        self.m = []; self.pre = []; self.gap = []; self.res = []
    def mfma(self, t, reserve=0):
        self.m.append(I(t)); self.pre.append([]); self.gap.append([]); self.res.append(reserve); return len(self.m) - 1
    @staticmethod
    def cost(x):
        if x.kind == 'x': return 0
        return 2 if opbase(x.op) in TRANS else 1
    def load(self, k): return self.res[k] + sum(self.cost(x) for x in self.gap[k])
    def put(self, k, x): self.gap[k].append(x if isinstance(x, I) else I(x))
    def place(self, items, lo, hi, cap=2, dense=False):
        groups = []
        for x in items:
            if isinstance(x, str):
                for l in x.split('\n'):
                    if l.strip(): groups.append([I(l)])
            elif isinstance(x, I): groups.append([x])
            else: groups.append([y if isinstance(y, I) else I(y) for y in x])
        free = [k for k in range(lo, hi) for _ in range(max(0, cap - self.load(k)))]
        need = sum(self.cost(y) for g in groups for y in g)
        assert need <= len(free) + 8, f'no room: need {need} have {len(free)} in [{lo},{hi})'
        used = 0; k = lo
        for g in groups:
            c = sum(self.cost(y) for y in g)
            idx = used if dense else (used * len(free)) // max(need, 1)
            k = max(k, free[min(idx, len(free) - 1)])
            while k < hi - 1 and self.load(k) + min(c, cap) > cap: k += 1
            for y in g: self.gap[k].append(y)
            used += c
        return k
    def emit(self, P):
        for k in range(len(self.m)):
            P.add(self.pre[k]); P.add([self.m[k]]); P.add(self.gap[k])
```

```python
import sys, struct, math
sys.path.insert(0, 'bench')
from asmlib import *
from gen_common import *
def f2u(x): return struct.unpack('<I', struct.pack('<f', x))[0]
def fh(x): return hex(f2u(x))
p2 = lambda x: f'v[{x}:{x+1}]'
p4 = lambda x: f'v[{x}:{x+3}]'
a4 = lambda x: f'a[{x}:{x+3}]'
s4 = lambda x: f's[{x}:{x+3}]'
s2_ = lambda x: f's[{x}:{x+1}]'

LDS_X, LDS_W, LDS_B, LDS_MISC, LDS_TOTAL = 0, 65536, 122880, 139264, 163840
L_CSP = LDS_MISC; L_CSUM = LDS_MISC + 8192; L_HT = LDS_MISC + 9216
S_W, S_M, S_J, S_R = 3, 4, 5, 6
SRD_X, SRD_W, SRD_B, SRD_WS, SRD_OUT, SRD_WD, SRD_CR, SRD_CI, SRD_T = 8, 12, 16, 20, 24, 28, 32, 36, 40
S_T0, S_T1, S_T2, S_T3, S_CNT = 44, 45, 46, 47, 48
S_LX, S_LW, S_LB = 49, 50, 51
S_KQ, S_N2, S_R2, S_GW = 52, 53, 54, 55
S_MK = 56
S_XO, S_BO, S_U0, S_U1 = 60, 61, 62, 63
KA = 64
P_X, P_LRE, P_LIM, P_BRE, P_BIM, P_CRE, P_CIM, P_LDT = [KA + 2*i for i in range(8)]
P_DSK, P_BX, P_WG, P_WU, P_WD, P_OUT, P_DBG, P_WS = [KA + 16 + 2*i for i in range(8)]
S_PC = P_BX
S_KX, S_KW, S_KB, S_KP = 98, 99, 100, 101
S_DA, S_DD, S_DC, S_KA, S_LD = 98, 99, 100, 101, 7
WS_A2 = 0; WS_XCH = 32 << 20; WS_STATS = 24 << 20; WS_BS = WS_STATS + 16384
WS_CS = 25 << 20; WS_AGG = 26 << 20; WS_FLAG = 27 << 20; WS_XF = 28 << 20; WS_STAMP = 200 << 20
WSR = s4(SRD_WS)
OOB = 0x7ff00000
SPIN_MAX = 200000
L = 1
V_XD, V_BD, V_WD, V_XR, V_BR, V_WR, V_PA, V_DUM = 2, 4, 6, 13, 15, 17, 18, 19
V_U, V_SA, V_L16, V_XC, V_BC, V_SX, V_D4, V_CS, V_PD, V_T = 20, 22, 23, 24, 28, 32, 36, 40, 48, 56
def acc_ffn(mat, b, tb):
    if b < 6: return ('v', 64 + ((b*2 + mat)*4 + tb)*4)
    return ('a', (mat*4 + tb)*4)
def acc_ssm(c, b, tb): return ('a', 32 + ((c*2 + b)*4 + tb)*4)
def r4(x): return f'{x[0]}[{x[1]}:{x[1]+3}]'
A_XF, A_RING, A_SC = 96, 128, 192
BLOCKS = [('s', 0, 0), ('s', 0, 1), ('s', 1, 0), ('s', 1, 1)] + [('f', mat, b) for b in range(7) for mat in range(2)]
K0 = -2*math.sqrt(2/math.pi)*math.log2(math.e); K1 = K0*0.044715
LOG2E = math.log2(math.e)
V2_A, V2_D, V2_C, V2_RC, V2_RD = 2, 6, 8, 10, 12
A2_ACT, A2_W = 96, 160
def acc2(p, nb): return 128 + (p*8 + nb)*4

def tagged(lines, tag):
    it = [I(x) for x in lines]
    for x in it:
        if x.kind == 'vm': x.tag = tag
    return it

class Gen:
    def __init__(self, cfg):
        self.cfg = cfg; self.P = Prog(); self.P.seg(); self.slow = []; self.nl = 0; self.nst = 0
    def e(self, *a, **k): self.P.e(*a, **k)
    def lab(self, p): self.nl += 1; return f'L_{p}{self.nl}'
    def stamp_items(self):
        if not self.cfg.get('prof'): return []
        k = self.nst; self.nst += 1
        assert k < 16
        return [['s_memrealtime s[96:97]', 's_memtime s[0:1]' if k else 's_memtime s[60:61]', 's_waitcnt lgkmcnt(0)', f'v_accvgpr_write_b32 a{224+k}, s96', f'v_accvgpr_write_b32 a{240+k}, s{0 if k else 60}']]
    def stamp(self):
        for g in self.stamp_items():
            for x in g: self.e(x)
    def srd(self, d, ptr, nbytes):
        return f's_mov_b32 s{d}, s{ptr}\ns_mov_b32 s{d+1}, s{ptr+1}\ns_mov_b32 s{d+2}, {nbytes}\ns_mov_b32 s{d+3}, 0x20000'
    def guard(self, load, check):
        sl, bk, lp = self.lab('slow'), self.lab('back'), self.lab('lp')
        self.slow.append(f'{sl}:\ns_mov_b32 s{S_CNT}, {SPIN_MAX}\n{lp}:\ns_waitcnt vmcnt(0)\ns_nop 7\n{load}\ns_waitcnt vmcnt(0)\n{check}\n'
                         f's_cbranch_vccz {bk}\ns_sleep 1\ns_sub_u32 s{S_CNT}, s{S_CNT}, 1\ns_cmp_lg_u32 s{S_CNT}, 0\ns_cbranch_scc1 {lp}\ns_branch {bk}')
        return [x for x in check.split('\n')] + [[f's_cbranch_vccnz {sl}', f'{bk}:']]
    def flat(self, items):
        for x in items:
            if isinstance(x, str): self.e(x)
            elif isinstance(x, I): self.P.add([x])
            else: self.flat(x)
    @staticmethod
    def maxchk(t, base, n):
        o = [f'v_max_u32 v{t}, v{base}, v{base+1}']
        for k in range(2, n, 2): o.append(f'v_max3_u32 v{t}, v{t}, v{base+k}, v{base+k+1}')
        return '\n'.join(o + [f'v_cmp_eq_u32 vcc, -1, v{t}'])

    def frag_reads(self, k, kk, slot):
        ty, c, b = BLOCKS[k]; r = A_RING + (k % 6)*4
        if ty == 's': return [f'ds_read_b128 {a4(r)}, v{V_BR+kk} offset:{slot*8192 + (c*2+b)*2048}']
        off = slot*28672 + c*14336 + kk*7168 + b*32
        return [f'ds_read_b64_tr_b16 a[{r}:{r+1}], v{V_WR} offset:{off}', f'ds_read_b64_tr_b16 a[{r+2}:{r+3}], v{V_WR} offset:{off + 1792}']
    def x_read(self, tb, kk, slot):
        return f'ds_read_b128 {a4(A_XF + (kk*4 + tb)*4)}, v{V_XR+kk} offset:{slot*8192 + tb*2048}'
    def dma_x(self, n, s):
        tb, half = n >> 1, n & 1
        o = [f's_add_u32 m0, s{S_LX}, {(s & 1)*8192 + tb*2048 + half*1024}']
        if half == 0: o.append(f's_mov_b32 s{S_KX}, {s*128 + tb*2048}')
        return tagged(o + [f'buffer_load_dwordx4 v{V_XD+half}, {s4(SRD_X)}, s{S_KX} offen lds'], ('X', s))
    def dma_s(self, n, s):
        pol = self.cfg.get('wpol', '')
        if n < 7:
            o = [f's_add_u32 m0, s{S_LW}, {(s & 1)*28672 + n*1024}']
            if n == 0: o.append(f's_mov_b32 s{S_KW}, {s*64*7168}')
            return tagged(o + [f'buffer_load_dwordx4 v{V_WD+n}, {s4(SRD_W)}, s{S_KW} offen {pol} lds'], ('S', s))
        half = n - 7
        o = [f's_add_u32 m0, s{S_LB}, {(s & 1)*8192 + half*1024}']
        if half == 0: o.append(f's_mov_b32 s{S_KB}, {s*128}')
        return tagged(o + [f'buffer_load_dwordx4 v{V_BD+half}, {s4(SRD_B)}, s{S_KB} offen lds'], ('S', s))
    def cs_load(self, dst, s):
        return [[f's_mov_b32 s{S_KP}, {s*64*7168}', f'buffer_load_dwordx4 {p4(dst)}, v{V_PA}, {s4(SRD_W)}, s{S_KP} offen {self.cfg.get("ppol","")}']]
    def cs_accum(self, src):
        o = []; t = V_U
        for k in range(4):
            o += [f'v_lshlrev_b32 v{t}, 16, v{src+k}', f'v_and_b32 v{t+1}, 0xffff0000, v{src+k}',
                  f'v_add_f32 v{V_CS+2*k}, v{V_CS+2*k}, v{t}', f'v_add_f32 v{V_CS+2*k+1}, v{V_CS+2*k+1}, v{t+1}']
        return o
    def w_addr(self, n):
        T = V_T
        return (f'v_add_u32 v{T}, {64*n}, v{L}\nv_mul_u32_u24 v{T+1}, 4682, v{T}\nv_lshrrev_b32 v{T+1}, 16, v{T+1}\n'
                f'v_mul_u32_u24 v{T+2}, 14, v{T+1}\nv_sub_u32 v{T+2}, v{T}, v{T+2}\n'
                f'v_add_u32 v{T+3}, s{S_T2}, v{T+2}\nv_lshl_add_u32 v{T+4}, v{T+2}, 1, s{S_T3}\n'
                f'v_cmp_gt_u32 vcc, 12, v{T+2}\nv_lshrrev_b32 v{T}, 1, v{T+1}\nv_xor_b32 v{T}, v{T}, v{T+1}\nv_cndmask_b32 v{T+3}, v{T+4}, v{T+3}, vcc\n'
                f'v_and_b32 v{T}, 4, v{T}\nv_mul_u32_u24 v{T}, 3, v{T}\nv_xor_b32 v{T}, v{T}, v{T+1}\n'
                f'v_mul_u32_u24 v{T}, 7168, v{T}\nv_lshl_add_u32 v{T}, v{T+3}, 4, v{T}\nv_add_u32 v{V_WD+n}, s{S_T1}, v{T}')

    def prologue(self):
        e = self.e; T = V_T; cfg = self.cfg
        assert all(((u*4682) >> 16) == u//14 for u in range(448))
        e(f's_load_dwordx16 s[{KA}:{KA+15}], s[0:1], 0\ns_load_dwordx16 s[{KA+16}:{KA+31}], s[0:1], 64')
        e(f'v_lshrrev_b32 v{T}, 6, v0\nv_and_b32 v{L}, 63, v0\nv_readfirstlane_b32 s{S_W}, v{T}')
        e(f's_bfe_u32 s{S_M}, s2, 0x30003\ns_lshr_b32 s{S_T0}, s2, 6\ns_and_b32 s{S_J}, s2, 7\ns_lshl_b32 s{S_J}, s{S_J}, 2\ns_add_u32 s{S_J}, s{S_J}, s{S_T0}')
        e(f's_lshl_b32 s{S_R}, s{S_M}, 2\ns_add_u32 s{S_R}, s{S_R}, s{S_W}')
        e(f'v_and_b32 v{T+5}, 7, v{L}\nv_lshrrev_b32 v{T+6}, 4, v{L}\nv_xor_b32 v{T+5}, v{T+5}, v{T+6}\nv_lshlrev_b32 v{T+5}, 4, v{T+5}\nv_lshrrev_b32 v{T+6}, 3, v{L}')
        e(f's_lshl_b32 s{S_T0}, s{S_R}, 17\nv_lshl_add_u32 v{V_XD}, v{T+6}, 13, v{T+5}\nv_add_u32 v{V_XD}, s{S_T0}, v{V_XD}')
        e(f'v_xor_b32 v{V_XD+1}, 64, v{V_XD}\nv_add_u32 v{V_XD+1}, {32*2048}, v{V_XD+1}')
        e(f's_lshr_b32 s{S_U0}, s{S_W}, 1\ns_and_b32 s{S_U1}, s{S_W}, 1')
        e(f's_lshl_b32 s{S_T0}, s{S_J}, 1\ns_add_u32 s{S_T0}, s{S_T0}, s{S_U0}\ns_lshl_b32 s{S_T0}, s{S_T0}, 15')
        e(f'v_lshl_add_u32 v{V_BD}, v{T+6}, 11, v{T+5}\nv_add_u32 v{V_BD}, s{S_T0}, v{V_BD}')
        e(f'v_xor_b32 v{V_BD+1}, 64, v{V_BD}\nv_add_u32 v{V_BD+1}, {8*2048}, v{V_BD+1}')
        e(f's_mul_i32 s{S_T1}, s{S_U0}, {32*7168}\ns_lshr_b32 s{S_T0}, s{S_J}, 1\ns_mul_i32 s{S_T0}, s{S_T0}, 448\ns_add_u32 s{S_T1}, s{S_T1}, s{S_T0}')
        e(f's_and_b32 s{S_T3}, s{S_J}, 1\ns_lshl_b32 s{S_T2}, s{S_T3}, 4\ns_sub_u32 s{S_T3}, s{S_T3}, 12')
        e(self.w_addr(0))
        e(f's_mul_i32 s{S_T0}, s{S_U0}, -28\ns_lshl_b32 s{S_KP}, s{S_M}, 3\ns_add_u32 s{S_T0}, s{S_T0}, s{S_KP}\ns_mul_i32 s{S_T0}, s{S_T0}, 7168\nv_add_u32 v{V_PA}, s{S_T0}, v{V_WD}')
        e(f's_lshl_b32 s{S_LX}, s{S_W}, 14')
        e(f's_mul_i32 s{S_LW}, s{S_U1}, 14336\ns_mul_i32 s{S_T0}, s{S_U0}, 7168\ns_add_u32 s{S_LW}, s{S_LW}, s{S_T0}\ns_add_u32 s{S_LW}, s{S_LW}, {LDS_W}')
        e(f's_lshl_b32 s{S_LB}, s{S_U1}, 12\ns_lshl_b32 s{S_T0}, s{S_U0}, 11\ns_add_u32 s{S_LB}, s{S_LB}, s{S_T0}\ns_add_u32 s{S_LB}, s{S_LB}, {LDS_B}')
        e(f'v_and_b32 v{V_U}, 15, v{L}\ns_lshl_b32 s{S_T0}, s{S_J}, 5\nv_add_lshl_u32 v{V_U}, v{V_U}, s{S_T0}, 1')
        e(f's_mov_b32 s{SRD_X+2}, 4194304\ns_mov_b32 s{SRD_X+3}, 0x20000\ns_mov_b32 s{SRD_W+2}, 7340032\ns_mov_b32 s{SRD_W+3}, 0x20000\ns_mov_b32 s{SRD_B+2}, 2097152\ns_mov_b32 s{SRD_B+3}, 0x20000')
        e(f's_cmp_eq_u32 s{S_U1}, 1\ns_waitcnt lgkmcnt(0)')
        e(f's_cselect_b64 {s2_(SRD_W)}, {s2_(P_WU)}, {s2_(P_WG)}\ns_cselect_b64 {s2_(SRD_B)}, {s2_(P_BIM)}, {s2_(P_BRE)}\ns_mov_b64 {s2_(SRD_X)}, {s2_(P_X)}')
        self.flat(self.cs_load(V_XC, 0))
        for n in (7, 8): self.flat(self.dma_s(n, 0))
        for k, p in enumerate((P_LRE, P_LIM, P_LDT)):
            for b in range(2): e(f'global_load_ushort v{V_SX+2*k+b}, v{V_U}, {s2_(p)} offset:{32*b}')
        e(f's_lshr_b32 s{S_T0}, s2, 6\ns_lshl_b32 s{S_T0}, s{S_T0}, 11')
        for n in range(8):
            tb, half = n >> 1, n & 1
            if half == 0: e(f's_xor_b32 s{S_KX}, s{S_T0}, {tb*2048}\ns_add_u32 m0, s{S_LX}, s{S_KX}')
            else: e(f's_add_u32 m0, m0, 1024')
            e(f'buffer_load_dwordx4 v{V_XD+half}, {s4(SRD_X)}, s{S_KX} offen lds', tag=('X', 0))
        self.flat(self.cs_load(V_BC, 1))
        for n in range(7):
            if n: e(self.w_addr(n))
            self.flat(self.dma_s(n, 0))
        e(self.srd(SRD_WS, P_WS, 268435456))
        e(f's_lshl_b32 s{S_GW}, s2, 2\ns_add_u32 s{S_GW}, s{S_GW}, s{S_W}')
        e(f's_lshl_b32 s{S_XO}, s{S_M}, 5\ns_add_u32 s{S_XO}, s{S_XO}, s{S_J}\ns_lshl_b32 s{S_XO}, s{S_XO}, 2\ns_add_u32 s{S_XO}, s{S_XO}, s{S_W}\ns_lshl_b32 s{S_XO}, s{S_XO}, 12')
        e(f's_lshl_b32 s{S_T0}, s{S_J}, 3\ns_add_u32 s{S_T0}, s{S_T0}, s{S_M}\ns_lshl_b32 s{S_BO}, s{S_T0}, 1\ns_add_u32 s{S_BO}, s{S_BO}, s{S_U0}\ns_lshl_b32 s{S_BO}, s{S_BO}, 12')
        e(f'v_mov_b32 v{T}, -1\nv_lshlrev_b32 v{T+1}, 2, v0\nv_lshlrev_b32 v{T+2}, 2, v{L}')
        e(f's_lshl_b32 s{S_T0}, s{S_T0}, 10\ns_add_u32 s{S_T0}, s{S_T0}, {WS_CS}')
        e(f'buffer_store_dword v{T}, v{T+1}, {WSR}, s{S_T0} offen sc1', tag=('CLR', 0))
        e(f's_lshl_b32 s{S_T0}, s{S_J}, 5\ns_add_u32 s{S_T0}, s{S_T0}, s{S_R}\ns_lshl_b32 s{S_T0}, s{S_T0}, 8\ns_add_u32 s{S_T0}, s{S_T0}, {WS_AGG}')
        e(f'buffer_store_dword v{T}, v{T+2}, {WSR}, s{S_T0} offen sc1', tag=('CLR', 0))
        e(f's_lshr_b32 s{S_T0}, s{S_XO}, 8\ns_add_u32 s{S_T0}, s{S_T0}, {WS_STATS}\nv_add_u32 v{T+1}, s{S_T0}, v{T+2}')
        e(f's_lshr_b32 s{S_T0}, s{S_BO}, 9\ns_lshl_b32 s{S_T1}, s{S_U1}, 12\ns_add_u32 s{S_T0}, s{S_T0}, s{S_T1}\ns_add_u32 s{S_T0}, s{S_T0}, {WS_BS}')
        e(f'v_writelane_b32 v{T+1}, s{S_T0}, 4\ns_add_u32 s{S_T0}, s{S_T0}, 4\nv_writelane_b32 v{T+1}, s{S_T0}, 5')
        e(f's_lshl_b32 s{S_T0}, s{S_R}, 6\ns_add_u32 s{S_T0}, s{S_T0}, s{S_J}\ns_lshl_b32 s{S_T0}, s{S_T0}, 2\ns_add_u32 s{S_T0}, s{S_T0}, {WS_FLAG}')
        e(f'v_writelane_b32 v{T+1}, s{S_T0}, 6\ns_add_u32 s{S_T0}, s{S_T0}, 128\nv_writelane_b32 v{T+1}, s{S_T0}, 7')
        e(f's_lshl_b32 s{S_T0}, s{S_GW}, 6\ns_add_u32 s{S_T0}, s{S_T0}, {WS_XF}\nv_writelane_b32 v{T+1}, s{S_T0}, 8')
        e(f's_mov_b64 exec, 0x1ff')
        e(f'buffer_store_dword v{T}, v{T+1}, {WSR}, 0 offen sc1', tag=('CLR', 0))
        e('s_mov_b64 exec, -1')
        for n in range(8): self.flat(self.dma_x(n, 1))
        self.flat(self.cs_load(V_PD, 2)); self.flat(self.cs_load(V_PD+4, 3))
        e(f's_getpc_b64 {s2_(S_PC)}\nL_pc:')
        self.flat(self.code_pf(0))
        for k in range(4): e(f'v_mov_b32 v{T+k}, 0')
        for r in range(64, 256, 16): e(f'v_mfma_f32_32x32x16_bf16 v[{r}:{r+15}], {p4(T)}, {p4(T)}, 0')
        for r in range(0, 96, 16): e(f'v_mfma_f32_32x32x16_bf16 a[{r}:{r+15}], {p4(T)}, {p4(T)}, 0')
        T = V_T + 4
        e(f'v_and_b32 v{T}, 15, v{L}\nv_lshrrev_b32 v{T+1}, 1, v{T}\nv_lshrrev_b32 v{T+2}, 4, v{L}\nv_xor_b32 v{T+1}, v{T+1}, v{T+2}')
        e(f'v_lshlrev_b32 v{T+1}, 4, v{T+1}\nv_lshl_add_u32 v{T}, v{T}, 7, v{T+1}')
        e(f'v_add_u32 v{V_XR}, s{S_LX}, v{T}\nv_xor_b32 v{V_XR+1}, 64, v{V_XR}\nv_add_u32 v{V_BR}, {LDS_B}, v{T}\nv_xor_b32 v{V_BR+1}, 64, v{V_BR}')
        e(f'v_lshrrev_b32 v{T}, 5, v{L}\nv_lshlrev_b32 v{T}, 4, v{T}\nv_bfe_u32 v{T+1}, v{L}, 2, 3\nv_add_u32 v{T}, v{T}, v{T+1}')
        e(f'v_mul_u32_u24 v{T}, 224, v{T}\nv_and_b32 v{T+1}, 3, v{L}\nv_lshl_add_u32 v{T}, v{T+1}, 3, v{T}\nv_add_u32 v{V_WR}, {LDS_W}, v{T}')
        e(f'v_lshlrev_b32 v{V_L16}, 4, v{L}\nv_lshrrev_b32 v{T}, 5, v{L}\nv_mul_u32_u24 v{T}, {2048-512}, v{T}\nv_add_u32 v{V_SA}, v{T}, v{V_L16}')
        self.ssm_consts()
        for k in range(8): e(f'v_mov_b32 v{V_CS+k}, 0')
        self.flat(self.cs_accum(V_XC)); self.flat(self.cs_accum(V_BC))
        for k in range(3): e(f'v_mov_b32 v{V_SX+k}, 0')
        e(self.srd(SRD_WD, P_WD, 7340032)); e(self.srd(SRD_CR, P_CRE, 2097152)); e(self.srd(SRD_CI, P_CIM, 2097152))
        e('s_barrier', need=[('S', 0), ('X', 0), ('CLR', 0)])
        for tb in range(4): e(self.x_read(tb, 0, 0))
        for k in range(5):
            for r in self.frag_reads(k, 0, 0): e(r)
        l = self.lab('arr')
        e(f's_cmp_lg_u32 s{S_W}, 0\ns_cbranch_scc1 {l}\nv_mov_b32 v{V_T}, 0\nv_mov_b32 v{V_T+1}, 1\ns_mov_b64 exec, 1')
        e(f'global_atomic_add v{V_T}, v{V_T+1}, {s2_(P_DBG)} sc1 ; nocount\ns_mov_b64 exec, -1\n{l}:')

    def code_pf(self, part):
        T = V_DUM
        return [f's_lshr_b32 s{S_U0}, s2, 3', f's_lshl_b32 s{S_U0}, s{S_U0}, 2', f's_add_u32 s{S_U0}, s{S_U0}, s{S_W}', f's_lshl_b32 s{S_U0}, s{S_U0}, 8',
                f's_add_u32 s{S_U0}, s{S_U0}, {part*32768}', f's_min_u32 s{S_U0}, s{S_U0}, L_codeend-L_pc-256',
                f'v_lshrrev_b32 v{T}, 5, v{L}', f'v_lshl_add_u32 v{T}, v{T}, 7, s{S_U0}', f'global_load_dword v{V_D4+3}, v{T}, {s2_(S_PC)} ; nodef']

    def ssm_consts(self):
        e = self.e; U = V_CS; PR = V_SX
        G16, G512 = V_T+4, V_T+5
        e(f'v_lshrrev_b32 v{G512}, 4, v{L}\nv_cvt_f32_u32 v{U}, v{G512}\nv_mul_f32 v{G16}, {fh(16.0)}, v{U}')
        e(f'v_mov_b32 v{G512}, {fh(1536.0)}\nv_fmac_f32 v{G512}, {fh(-512.0)}, v{U}')
        for b in range(2):
            lr, li, ld = PR+b, PR+2+b, PR+4+b
            e(f'v_lshlrev_b32 v{lr}, 16, v{lr}\nv_lshlrev_b32 v{li}, 16, v{li}\nv_lshlrev_b32 v{ld}, 16, v{ld}')
            e(f'v_mul_f32 v{ld}, {fh(LOG2E)}, v{ld}\nv_exp_f32 v{ld}, v{ld}\nv_cvt_pk_bf16_f32 v{ld}, v{ld}, v{ld}\nv_and_b32 v{ld}, 0xffff0000, v{ld}')
            zr, zi = U, U+1
            e(f'v_mul_f32 v{zr}, v{ld}, v{lr}\nv_mul_f32 v{zi}, v{ld}, v{li}\nv_mul_f32 v{zr}, {fh(LOG2E)}, v{zr}\nv_mul_f32 v{zi}, {fh(1/(2*math.pi))}, v{zi}')
            a, an, cs, sn = U+2, U+3, U+4, U+5
            def cpow(n, slot):
                n = n if isinstance(n, str) else fh(float(n))
                e(f'v_mul_f32 v{a}, {n}, v{zr}\nv_mul_f32 v{an}, {n}, v{zi}')
                e(f'v_fract_f32 v{an}, v{an}\nv_exp_f32 v{a}, v{a}\nv_cos_f32 v{cs}, v{an}\nv_sin_f32 v{sn}, v{an}')
                e(f'v_mul_f32 v{cs}, v{a}, v{cs}\nv_mul_f32 v{sn}, v{a}, v{sn}')
                e(f'v_accvgpr_write_b32 a{A_SC+b*14+2*slot}, v{cs}\nv_accvgpr_write_b32 a{A_SC+b*14+2*slot+1}, v{sn}')
            cpow('1.0', 0)
            n2, cr, ci = ld, U+6, U+7
            e(f'v_add_f32 v{cs}, -1.0, v{cs}\nv_mul_f32 v{n2}, v{lr}, v{lr}\nv_fmac_f32 v{n2}, v{li}, v{li}\nv_rcp_f32 v{n2}, v{n2}')
            e(f'v_mul_f32 v{cr}, v{cs}, v{lr}\nv_fmac_f32 v{cr}, v{sn}, v{li}\nv_mul_f32 v{ci}, v{sn}, v{lr}\nv_fma_f32 v{ci}, -v{cs}, v{li}, v{ci}')
            e(f'v_add_f32 v{n2}, v{n2}, v{n2}\nv_mul_f32 v{cr}, v{cr}, v{n2}\nv_mul_f32 v{ci}, v{ci}, v{n2}')
            e(f'v_accvgpr_write_b32 a{A_SC+b*14+2}, v{cr}\nv_accvgpr_write_b32 a{A_SC+b*14+3}, v{ci}')
            cpow(16, 2); cpow(32, 3); cpow(64, 4); cpow(f'v{G16}', 5); cpow(f'v{G512}', 6)

    def g1(self):
        S = Stream(); cfg = self.cfg
        XK = (0, 2, 3, 5, 6, 8, 9, 11)
        for s in range(16):
            slot = s & 1; last = s == 15
            for kk in range(2):
                for k in range(18):
                    ty, c, b = BLOCKS[k]; w = a4(A_RING + (k % 6)*4)
                    g0 = len(S.m)
                    for g, tb in enumerate((0, 1, 2, 3) if k % 2 == 0 else (3, 2, 1, 0)):
                        xf = a4(A_XF + (kk*4 + tb)*4)
                        if ty == 's': a = r4(acc_ssm(c, b, tb)); S.mfma(f'v_mfma_f32_16x16x32_bf16 {a}, {xf}, {w}, {a}', 1 if g == 3 else 0)
                        else: a = r4(acc_ffn(c, b, tb)); S.mfma(f'v_mfma_f32_16x16x32_bf16 {a}, {w}, {xf}, {a}', 1 if g == 3 else 0)
                    rd = []
                    if kk == 0: rd = self.frag_reads(k+5, 0, slot) if k + 5 < 18 else self.frag_reads(k+5-18, 1, slot)
                    elif k <= 12: rd = self.frag_reads(k+5, 1, slot)
                    elif not last:
                        if k == 15: rd = sum((self.frag_reads(q, 0, slot ^ 1) for q in range(3)), [])
                        elif k > 15: rd = self.frag_reads(k-13, 0, slot ^ 1)
                    for q, r in enumerate(rd): S.put(g0+q, r)
                    if kk == 0 and k in (1, 5, 9, 13): S.put(g0+2, self.x_read((k-1)//4, 1, slot))
                    if kk == 1 and k in (13, 14) and not last:
                        for q in range(2): S.put(g0+q, I(self.x_read((k-13)*2+q, 0, slot ^ 1), need=[('X', s+1)]))
                        if k == 13: S.res[g0] += 1
                    dm = None
                    if kk == 0 and s < 15 and k % 2 == 0: dm = self.dma_s(k//2, s+1)
                    if kk == 1 and s < 14 and k in XK: dm = self.dma_x(XK.index(k), s+2)
                    if dm:
                        for q, x in enumerate(dm): S.put(g0 + 3 - len(dm) + q, x)
                    if kk == 1 and k == 15:
                        S.pre[g0] += [I('s_waitcnt lgkmcnt(0)', need=[('S', s+1)] if not last else []), I('s_barrier')]
                        S.res[g0-1] += 2
        pos = lambda s, kk, k: s*144 + kk*72 + k*4
        warm = [(SRD_WD, n) for n in range(7)] + [(SRD_CR, 0), (SRD_CI, 0), (SRD_CR, 1), (SRD_CI, 1)]
        w0 = cfg.get('warm0', 2)
        for s in range(16):
            job = []
            if s <= 13: job += self.cs_accum(V_PD + 4*(s & 1))
            if 2 <= s <= 9:
                src = V_XC if s % 2 == 0 else V_BC; t = V_U
                for k in range(4):
                    job += [f'v_lshlrev_b32 v{t}, 16, v{src+k}', f'v_and_b32 v{t+1}, 0xffff0000, v{src+k}']
                    if s % 2 == 0: job += [f'v_add_f32 v{V_SX}, v{V_SX}, v{t}', f'v_fmac_f32 v{V_SX+1}, v{t}, v{t}', f'v_add_f32 v{V_SX}, v{V_SX}, v{t+1}', f'v_fmac_f32 v{V_SX+1}, v{t+1}, v{t+1}']
                    else: job += [f'v_add_f32 v{V_SX+2}, v{V_SX+2}, v{t}', f'v_add_f32 v{V_SX+2}, v{V_SX+2}, v{t+1}']
            if job: S.place(job, pos(s, 0, 0), pos(s, 0, 16))
            ld = []
            if s <= 11: ld += self.cs_load(V_PD + 4*(s & 1), s+4)
            if s <= 7:
                ch = ((s >> 1) + 1) & 3
                if s % 2 == 0: ld.append(f'buffer_load_dwordx4 {p4(V_XC)}, v{V_SA}, {s4(SRD_X)}, s{S_XO} offen offset:{512*ch}')
                else: ld.append(f'buffer_load_dwordx4 {p4(V_BC)}, v{V_SA}, {s4(SRD_B)}, s{S_BO} offen offset:{512*ch}')
            if w0 <= s < w0 + 11:
                sr, n = warm[s - w0]
                ld += [f's_lshl_b32 s{S_U1}, s{S_GW}, 10', f's_add_u32 s{S_U1}, s{S_U1}, {n << 20}', f'buffer_load_dwordx4 {p4(V_D4)}, v{V_L16}, {s4(sr)}, s{S_U1} offen ; nodef']
            if s == 9: ld += self.code_pf(1)
            if s == 14: ld += self.code_pf(2)
            if ld: S.place(ld, pos(s, 0, 16), pos(s, 1, 6), dense=True)
        T = V_T; job = []
        for v in (V_SX, V_SX+1, V_SX+2):
            for sh in (8, 4, 2, 1): job.append(f'v_add_f32_dpp v{v}, v{v}, v{v} row_ror:{sh} row_mask:0xf bank_mask:0xf')
            job += [f'v_mov_b32 v{T}, v{v}', f'v_permlane16_swap_b32 v{v}, v{T}', f'v_add_f32 v{v}, v{v}, v{T}']
        bfr = lambda v: [f'v_cvt_pk_bf16_f32 v{v}, v{v}, v{v}', f'v_and_b32 v{v}, 0xffff0000, v{v}']
        job += [f'v_mul_f32 v{V_SX}, {fh(-1/1024)}, v{V_SX}', f'v_mul_f32 v{V_SX+1}, {fh(1/1024)}, v{V_SX+1}',
                f'v_fma_f32 v{V_SX+1}, -v{V_SX}, v{V_SX}, v{V_SX+1}', f'v_max_f32 v{V_SX+1}, 0, v{V_SX+1}'] + bfr(V_SX+1)
        job += [f'v_add_f32 v{V_SX+1}, {fh(1e-5)}, v{V_SX+1}'] + bfr(V_SX+1) + [f'v_sqrt_f32 v{V_SX+1}, v{V_SX+1}'] + bfr(V_SX+1) + bfr(V_SX)
        job += [f'v_min_u32 v{V_SX+2}, -2, v{V_SX+2}', f'v_and_b32 v{T}, 31, v{L}', f'v_lshlrev_b32 v{T}, 28, v{T}', f'v_and_b32 v{T+1}, 16, v{L}', f'v_lshl_or_b32 v{T}, v{T+1}, 24, v{T}',
                f'v_lshrrev_b32 v{T+1}, 5, v{L}', f'v_lshl_or_b32 v{T+2}, v{T+1}, 3, v{T}', f'v_lshl_or_b32 v{T+3}, v{T+1}, 2, v{T}',
                f's_lshr_b32 s{S_U0}, s{S_XO}, 8', f's_add_u32 s{S_U0}, s{S_U0}, {WS_STATS}',
                f'buffer_store_dwordx2 {p2(V_SX)}, v{T+2}, {WSR}, s{S_U0} offen sc1',
                f's_lshr_b32 s{S_U0}, s{S_BO}, 9', f's_and_b32 s{S_T1}, s{S_W}, 1', f's_lshl_b32 s{S_T1}, s{S_T1}, 12', f's_add_u32 s{S_U0}, s{S_U0}, s{S_T1}', f's_add_u32 s{S_U0}, s{S_U0}, {WS_BS}',
                f'buffer_store_dword v{V_SX+2}, v{T+3}, {WSR}, s{S_U0} offen sc1']
        S.place(job, pos(10, 1, 6), pos(11, 0, 0) + 60)
        ldc = f'global_load_dword v{T+1}, v{T}, {s2_(P_DBG)} sc1'
        S.place([f'v_mov_b32 v{T}, 0', ldc], pos(12, 1, 6), pos(12, 1, 12), dense=True)
        S.place(self.guard(ldc, f'v_cmp_gt_u32 vcc, 256, v{T+1}'), pos(13, 1, 8), pos(13, 1, 12))
        job = [f's_and_b32 s{S_U0}, s{S_W}, 1', f's_lshl_b32 s{S_U0}, s{S_U0}, 12', f's_lshr_b32 s{S_T1}, s{S_W}, 1', f's_lshl_b32 s{S_T1}, s{S_T1}, 11',
               f's_add_u32 s{S_U0}, s{S_U0}, s{S_T1}', f's_add_u32 s{S_U0}, s{S_U0}, {L_CSP}', f'v_lshl_add_u32 v{T+2}, v{L}, 5, s{S_U0}',
               f'ds_write_b128 v{T+2}, {p4(V_CS)}', f'ds_write_b128 v{T+2}, {p4(V_CS+4)} offset:16']
        S.place(job, pos(13, 0, 16), pos(13, 1, 8))
        G = 36
        job = [f'v_lshrrev_b32 v{G+8}, 7, v0', f'v_lshlrev_b32 v{G+8}, 12, v{G+8}', f'v_and_b32 v{G+9}, 127, v0', f'v_lshl_add_u32 v{G+8}, v{G+9}, 2, v{G+8}', f'v_add_u32 v{G+8}, {L_CSP}, v{G+8}']
        job += [f'ds_read_b32 v{24+k}, v{G+8} offset:{(k>>2)*2048 + (k&3)*448}' for k in range(8)]
        job += [f's_lshl_b32 s{S_T2}, s{S_J}, 13', f's_add_u32 s{S_T2}, s{S_T2}, {WS_CS}', f's_lshl_b32 s{S_T1}, s{S_M}, 10', f's_add_u32 s{S_T1}, s{S_T1}, s{S_T2}', f's_add_u32 s{S_T3}, s{S_T2}, 4096', f'v_lshlrev_b32 v{G+8}, 2, v0']
        job += [f'v_add_f32 v24, v24, v{24+k}' for k in range(1, 8)]
        job += [f'v_min_u32 v24, -2, v24', f'buffer_store_dword v24, v{G+8}, {WSR}, s{S_T1} offen sc1']
        S.place(job, pos(13, 1, 15), pos(14, 0, 8), dense=True)
        TT = 52
        lds_ = f'buffer_load_dwordx4 {p4(TT)}, v60, {WSR}, s{S_XO} offen sc1\nbuffer_load_dwordx4 {p4(TT+4)}, v60, {WSR}, s{S_XO} offen offset:16 sc1'
        S.place([f'v_and_b32 v60, 15, v{L}', 'v_lshlrev_b32 v60, 5, v60', f's_lshl_b32 s{S_XO}, s{S_R}, 9', f's_add_u32 s{S_XO}, s{S_XO}, {WS_STATS}', lds_], pos(14, 0, 8), pos(14, 0, 16))
        job = self.guard(lds_, self.maxchk(61, TT, 8))
        C = 20
        for tb in range(4):
            nm, sd = TT+2*tb, TT+2*tb+1
            job += [f'v_mov_b32 v{C+4*tb}, v{nm}', f'v_mul_f32 v{C+4*tb+1}, v{sd}, v{sd}', f'v_rcp_f32 v{sd}, v{sd}', f'v_mul_f32 v{C+4*tb+2}, {fh(K0)}, v{sd}',
                    f'v_mul_f32 v{nm}, v{sd}, v{sd}', f'v_mul_f32 v{nm}, v{nm}, v{sd}', f'v_mul_f32 v{C+4*tb+3}, {fh(K1)}, v{nm}']
        S.place(job, pos(15, 0, 0), pos(15, 0, 12))
        ldg = '\n'.join(f'buffer_load_dword v{G+k}, v{G+8}, {WSR}, s{S_T2 if k < 4 else S_T3} offen offset:{(k&3)*1024} sc1' for k in range(8))
        gp = cfg.get('gpos', 2)
        S.place([ldg], pos(15, 0, gp), pos(15, 0, gp+6), cap=3)
        job = self.guard(ldg, self.maxchk(G+9, G, 8)) + [f'v_add_f32 v{G}, v{G}, v{G+k}' for k in range(1, 8)]
        job += [f'v_add_u32 v{G+8}, {L_CSUM}, v{G+8}', f'ds_write_b32 v{G+8}, v{G}']
        S.place(job, pos(15, 1, 8), pos(15, 1, 14))
        S.place(self.g2_setup(), pos(15, 0, 12), pos(15, 1, 8))
        S.place(self.ffn_setup(), pos(15, 1, 12), pos(16, 0, 0), cap=3)
        S.emit(self.P)

    def ffn_setup(self):
        o = [f'v_lshrrev_b32 v60, 4, v{L}', 'v_lshlrev_b32 v60, 4, v60', f'v_add_u32 v60, {L_CSUM}, v60', f'v_lshlrev_b32 v61, 4, v{L}',
             f'v_lshrrev_b32 v62, 5, v{L}', 'v_lshl_add_u32 v62, v62, 9, v61',
             f's_lshr_b32 s{S_T1}, s{S_J}, 3', f's_lshl_b32 s{S_U0}, s{S_R}, 2', f's_add_u32 s{S_T1}, s{S_T1}, s{S_U0}', f's_mul_i32 s{S_BO}, s{S_T1}, {44*4096}']
        if WS_A2: o.append(f's_add_u32 s{S_BO}, s{S_BO}, {WS_A2}')
        o += [f's_and_b32 s{S_T1}, s{S_J}, 7', f's_lshl_b32 s{S_T1}, s{S_T1}, 12', f's_add_u32 s{S_U0}, s{S_BO}, s{S_T1}',
              f's_bfe_u32 s{S_T1}, s{S_J}, 0x20001', f's_lshl_b32 s{S_T1}, s{S_T1}, 12', f's_add_u32 s{S_U1}, s{S_BO}, s{S_T1}',
              f's_and_b32 s{S_T1}, s{S_J}, 1', f's_lshl_b32 s{S_T1}, s{S_T1}, 9', f's_add_u32 s{S_U1}, s{S_U1}, s{S_T1}', f's_add_u32 s{S_U1}, s{S_U1}, {24*4096}']
        return o
    def csread(self, b):
        o = 36 + (b & 1)*8
        self.e(f'ds_read_b128 {p4(o)}, v60 offset:{b*64}\nds_read_b128 {p4(o+4)}, v60 offset:{512+b*64}')
    def ffn_block(self, b, mix=None):
        e = self.e; C, CS, TT = 20, 36, 52
        mix = list(mix or [])
        def m():
            if mix: self.flat([mix.pop(0)])
        if b < 6: self.csread(b+1)
        if b == 6:
            for mat in range(2):
                for tb in range(4):
                    for r in range(4): e(f'v_accvgpr_read_b32 v{acc_ffn(mat, 5, tb)[1]+r}, a{acc_ffn(mat, 6, tb)[1]+r}')
        cg = CS + (b & 1)*8; cu = cg + 4; bb_ = min(b, 5)
        for tp in range(2):
            U = []
            for tb in (2*tp, 2*tp+1):
                O = acc_ffn(1, b & ~1, tb)[1] + 2*(b & 1) if b < 6 else acc_ffn(1, 5, 2*tp)[1] + 2*(tb & 1)
                for h in range(2): U.append((acc_ffn(0, bb_, tb)[1]+2*h, acc_ffn(1, bb_, tb)[1]+2*h, cg+2*h, cu+2*h, C+4*tb, TT+2*len(U), O+h))
            e('.p2align 3')
            for (g, u, a, bb, c, t, o) in U: e(f'v_pk_fma_f32 {p2(g)}, {p2(a)}, {p2(c)}, {p2(g)} op_sel_hi:[1,0,1]')
            for (g, u, a, bb, c, t, o) in U: e(f'v_pk_mul_f32 {p2(t)}, {p2(g)}, {p2(g)}')
            for (g, u, a, bb, c, t, o) in U: e(f'v_pk_fma_f32 {p2(t)}, {p2(t)}, {p2(c+2)}, {p2(c+2)} op_sel:[0,1,0] op_sel_hi:[1,1,0]')
            for (g, u, a, bb, c, t, o) in U: e(f'v_pk_mul_f32 {p2(t)}, {p2(g)}, {p2(t)}')
            for (g, u, a, bb, c, t, o) in U: e(f'v_exp_f32 v{t}, v{t}\nv_exp_f32 v{t+1}, v{t+1}')
            for (g, u, a, bb, c, t, o) in U: e(f'v_pk_fma_f32 {p2(u)}, {p2(bb)}, {p2(c)}, {p2(u)} op_sel_hi:[1,0,1]')
            for (g, u, a, bb, c, t, o) in U: e(f'v_pk_fma_f32 {p2(t)}, {p2(t)}, {p2(c)}, {p2(c)} op_sel:[0,1,1] op_sel_hi:[1,1,1]')
            for (g, u, a, bb, c, t, o) in U: e(f'v_rcp_f32 v{t}, v{t}\nv_rcp_f32 v{t+1}, v{t+1}')
            for (g, u, a, bb, c, t, o) in U: e(f'v_pk_mul_f32 {p2(g)}, {p2(g)}, {p2(u)}')
            for (g, u, a, bb, c, t, o) in U: e(f'v_pk_mul_f32 {p2(g)}, {p2(g)}, {p2(t)}')
            for (g, u, a, bb, c, t, o) in U: e(f'v_cvt_pk_bf16_f32 v{o}, v{g}, v{g+1}')
            tag = ('L1', 0) if b < 4 else ('L2', 0)
            if b < 6 and b & 1:
                for tb in (2*tp, 2*tp+1):
                    e(f'buffer_store_dwordx4 {p4(acc_ffn(1, b & ~1, tb)[1])}, v61, {WSR}, s{S_U0} offen offset:{tb*1024} sc1', tag=tag)
                if tp == 1: e(f's_add_u32 s{S_U0}, s{S_U0}, {8*4096}')
            if b == 6:
                O = acc_ffn(1, 5, 2*tp)[1]
                e(f'v_permlane32_swap_b32 v{O}, v{O+2}\nv_permlane32_swap_b32 v{O+1}, v{O+3}')
                e(f'buffer_store_dwordx4 {p4(O)}, v62, {WSR}, s{S_U1} offen offset:{2*tp*1024} sc1', tag=tag)
            m(); m()
        while mix: m()
    def flag_items(self, kind, va, vb, st):
        return [f's_lshl_b32 s{st}, s{S_R}, 6', f's_add_u32 s{st}, s{st}, s{S_J}', f's_lshl_b32 s{st}, s{st}, 2', f's_add_u32 s{st}, s{st}, {WS_FLAG + kind*128}',
                f'v_mov_b32 v{va}, 1', f'v_min_u32 v{vb}, 1, v{L}', f'v_lshlrev_b32 v{vb}, 30, v{vb}',
                I(f'buffer_store_dword v{va}, v{vb}, {WSR}, s{st} offen sc1', need=[(('L1', 'L2')[kind], 0)])]
    def poll_setup(self, kind, va, st):
        return [f's_lshl_b32 s{st}, s{S_R2}, 3', f's_add_u32 s{st}, s{st}, s{S_KQ}', f's_lshl_b32 s{st}, s{st}, 5', f's_add_u32 s{st}, s{st}, {WS_FLAG + kind*128}',
                f'v_and_b32 v{va}, 7, v{L}', f'v_lshlrev_b32 v{va}, 2, v{va}']

    H, ST, KK, BS, AG = 64, 128, 160, 188, 192
    def h(self, b, st): return self.H + (b*16 + st)*2
    def kc(self, b, slot): return self.KK + b*14 + 2*slot
    @staticmethod
    def cfma(d, x, lam, add):
        return [f'v_pk_fma_f32 {p2(d)}, {p2(x)}, {p2(lam)}, {p2(add)} op_sel_hi:[1,0,1]',
                f'v_pk_fma_f32 {p2(d)}, {p2(x)}, {p2(lam)}, {p2(d)} op_sel:[1,1,0] op_sel_hi:[0,1,1] neg_lo:[0,1,0]']
    @staticmethod
    def cmul(d, x, lam):
        return [f'v_pk_mul_f32 {p2(d)}, {p2(x)}, {p2(lam)} op_sel_hi:[1,0]',
                f'v_pk_fma_f32 {p2(d)}, {p2(x)}, {p2(lam)}, {p2(d)} op_sel:[1,1,0] op_sel_hi:[0,1,1] neg_lo:[0,1,0]']
    def both(self, f):
        for x, y in zip(f(0), f(1)): self.e(x); self.e(y)
    def ssm_loads(self):
        o = [f'v_lshrrev_b32 v12, 4, v{L}', 'v_lshlrev_b32 v12, 7, v12']
        o += [f'buffer_load_dwordx4 {p4(64+4*k)}, v12, {WSR}, s{S_XO} offen offset:{16*k} sc1' for k in range(8)]
        o += [f'v_and_b32 v13, 15, v{L}', 'v_lshlrev_b32 v13, 2, v13', f's_lshl_b32 s{S_T2}, s{S_J}, 7', f's_add_u32 s{S_T2}, s{S_T2}, {WS_BS}', f's_add_u32 s{S_T3}, s{S_T2}, 4096']
        self.ldbs = '\n'.join(f'buffer_load_dword v{96+2*b+c}, v13, {WSR}, s{(S_T2, S_T3)[c]} offen offset:{64*b} sc1' for b in range(2) for c in range(2))
        return o + [self.ldbs]
    def ssm_part1(self):
        e = self.e
        self.ST, self.BS, self.KK, self.H = 64, 96, 100, 128
        ST, BS, h, kc = self.ST, self.BS, self.h, self.kc
        self.flat(self.guard(self.ldbs, self.maxchk(14, BS, 4)))
        e('.p2align 3')
        for k in range(28): e(f'v_accvgpr_read_b32 v{self.KK+k}, a{A_SC+k}')
        for b in range(2):
            for tb in range(4):
                for r in range(4):
                    for c in range(2): e(f'v_accvgpr_read_b32 v{h(b, 4*r+tb)+c}, a{acc_ssm(c, b, tb)[1]+r}')
        for st in range(16): e(f'v_rcp_f32 v{ST+2*st+1}, v{ST+2*st+1}')
        for st in range(16):
            for b in range(2): e(f'v_pk_fma_f32 {p2(h(b,st))}, {p2(BS+2*b)}, {p2(ST+2*st)}, {p2(h(b,st))} op_sel_hi:[1,0,1]')
        for st in range(16):
            for b in range(2): e(f'v_pk_mul_f32 {p2(h(b,st))}, {p2(h(b,st))}, {p2(ST+2*st)} op_sel:[0,1] op_sel_hi:[1,1]')
        E, X, Y, AD = ST, ST+8, ST+12, ST+16
        for st in range(1, 16):
            self.both(lambda b: self.cfma(E+4*(st&1)+2*b, h(b, 0) if st == 1 else E+4*((st-1)&1)+2*b, kc(b, 0), h(b, st)))
        Ef = E + 4
        e(f'v_subrev_u32 v{AD}, 16, v{L}\nv_lshlrev_b32 v{AD}, 2, v{AD}\nv_subrev_u32 v{AD+1}, 32, v{L}\nv_lshlrev_b32 v{AD+1}, 2, v{AD+1}')
        e(f'v_cmp_le_u32 {s2_(S_MK)}, 16, v{L}\nv_cmp_le_u32 {s2_(S_MK+2)}, 32, v{L}')
        for lvl in range(2):
            for k in range(4): e(f'ds_bpermute_b32 v{Y+k}, v{AD+lvl}, v{Ef+k}')
            if lvl == 0:
                e(f'v_and_b32 v{AD+10}, 15, v{L}\nv_lshlrev_b32 v{AD+10}, 4, v{AD+10}')
                e(f's_lshl_b32 s{S_T1}, s{S_J}, 13\ns_add_u32 s{S_T1}, s{S_T1}, {WS_AGG}')
                e(f's_add_u32 s{SRD_T}, s{P_WS}, s{S_T1}\ns_addc_u32 s{SRD_T+1}, s{P_WS+1}, 0\ns_mov_b32 s{SRD_T+2}, 8192\ns_mov_b32 s{SRD_T+3}, 0x20000')
                e(f'v_lshrrev_b32 v{AD+11}, 4, v{L}\ns_sub_u32 s{S_T1}, s{S_R}, 32\nv_lshl_add_u32 v{AD+11}, v{AD+11}, 3, s{S_T1}\nv_lshl_add_u32 v{AD+11}, v{AD+11}, 8, v{AD+10}')
            else:
                for k in range(8): e(f'v_add_u32 v{AD+2+k}, {256*k}, v{AD+11}\nv_min_u32 v{AD+2+k}, 0x100000, v{AD+2+k}')
            for k in range(4): e(f'v_cndmask_b32 v{Y+k}, 0, v{Y+k}, {s2_(S_MK+2*lvl)}')
            self.both(lambda b: self.cfma(Ef+2*b, Y+2*b, kc(b, 2+lvl), Ef+2*b))
        for k in range(4): e(f'ds_bpermute_b32 v{X+k}, v{AD}, v{Ef+k}')
        for k in range(4): e(f'v_min_u32 v{Y+k}, -2, v{Ef+k}')
        e(f's_lshl_b32 s{S_T1}, s{S_R}, 8\ns_mov_b32 exec_lo, 0\ns_mov_b32 exec_hi, 0xffff0000')
        e(f'buffer_store_dwordx4 {p4(Y)}, v{AD+10}, {s4(SRD_T)}, s{S_T1} offen sc1\ns_mov_b64 exec, -1')
        for k in range(4): e(f'v_cndmask_b32 v{X+k}, 0, v{X+k}, {s2_(S_MK)}')
        self.ldag = '\n'.join(f'buffer_load_dwordx4 {p4(self.AG+4*k)}, v{AD+2+k}, {s4(SRD_T)}, 0 offen sc1' for k in range(8))
    def ssm_part2(self, mix):
        e = self.e; ST, h, kc, AG = self.ST, self.h, self.kc, self.AG
        E, X, Y, AD = ST, ST+8, ST+12, ST+16
        self.flat(self.guard(self.ldag, self.maxchk(Y, AG, 32)))
        e('.p2align 3')
        for k in range(1, 8): self.both(lambda b: self.cfma(AG+4*k+2*b, AG+4*(k-1)+2*b, kc(b, 4), AG+4*k+2*b))
        self.both(lambda b: self.cmul(Y+2*b, AG+28+2*b, kc(b, 6)))
        for sw in ('v_permlane32_swap_b32', 'v_permlane16_swap_b32'):
            for k in range(4): e(f'v_mov_b32 v{E+k}, v{Y+k}')
            for k in range(4): e(f'{sw} v{Y+k}, v{E+k}')
            for k in range(4): e(f'v_add_f32 v{Y+k}, v{Y+k}, v{E+k}')
        self.both(lambda b: self.cfma(X+2*b, Y+2*b, kc(b, 5), X+2*b))
        self.flat(mix[0])
        e('.p2align 3')
        for st in range(16): self.both(lambda b: self.cfma(h(b, st), X+2*b if st == 0 else h(b, st-1), kc(b, 0), h(b, st)))
        e(f's_lshl_b32 s{S_T1}, s{S_W}, 11\ns_add_u32 s{S_T1}, s{S_T1}, {L_HT}')
        e(f'v_and_b32 v{AD}, 3, v{L}\nv_and_b32 v{AD+1}, 4, v{L}\nv_lshl_or_b32 v{AD}, v{AD+1}, 1, v{AD}\nv_and_b32 v{AD+1}, 8, v{L}\nv_lshrrev_b32 v{AD+1}, 1, v{AD+1}\nv_or_b32 v{AD}, v{AD}, v{AD+1}')
        e(f'v_lshlrev_b32 v{AD}, 5, v{AD}\nv_lshrrev_b32 v{AD+1}, 4, v{L}\nv_lshl_add_u32 v{AD}, v{AD+1}, 3, v{AD}\nv_add_u32 v{AD}, s{S_T1}, v{AD}')
        e(f'v_lshrrev_b32 v{AD+1}, 5, v{L}\nv_lshlrev_b32 v{AD+1}, 9, v{AD+1}\nv_and_b32 v{AD+2}, 31, v{L}\nv_lshl_add_u32 v{AD+1}, v{AD+2}, 3, v{AD+1}\nv_add_u32 v{AD+1}, s{S_T1}, v{AD+1}')
        e(f's_bfe_u32 s{S_T1}, s{S_J}, 0x20001\ns_lshl_b32 s{S_T1}, s{S_T1}, 2\ns_and_b32 s{S_T2}, s{S_J}, 1\ns_add_u32 s{S_T1}, s{S_T1}, s{S_T2}\ns_add_u32 s{S_T1}, s{S_T1}, 28')
        e(f's_lshl_b32 s{S_T1}, s{S_T1}, 12\ns_add_u32 s{S_T2}, s{S_T1}, s{S_BO}\ns_add_u32 s{S_T3}, s{S_T2}, 8192')
        def stores(tb):
            PK = AG + 16*(tb & 1)
            for c in range(2): e(f'buffer_store_dwordx4 {p4(PK+8+4*c)}, v61, {WSR}, s{(S_T2, S_T3)[c]} offen offset:{tb*1024} sc1', tag=('L2', 0))
        for tb in range(4):
            O = 224 + 16*(tb & 1); PK = AG + 16*(tb & 1)
            e('.p2align 3')
            for r in range(4): self.both(lambda b: self.cmul(O+(b*4+r)*2, h(b, 4*r+tb), kc(b, 1)))
            for b in range(2):
                o = O + b*8
                e(f'v_cvt_pk_bf16_f32 v{PK+4*b}, v{o}, v{o+2}\nv_cvt_pk_bf16_f32 v{PK+4*b+1}, v{o+4}, v{o+6}')
                e(f'v_cvt_pk_bf16_f32 v{PK+4*b+2}, -v{o+1}, -v{o+3}\nv_cvt_pk_bf16_f32 v{PK+4*b+3}, -v{o+5}, -v{o+7}')
            if tb: stores(tb-1)
            for b in range(2):
                for c in range(2): e(f'ds_write_b64 v{AD}, {p2(PK+4*b+2*c)} offset:{c*1024 + b*512}')
            for c in range(2):
                for hh in range(2): e(f'ds_read_b64_tr_b16 {p2(PK+8+4*c+2*hh)}, v{AD+1} offset:{c*1024 + hh*256}')
        self.flat(mix[1])
        stores(3)

    def g2_setup(self):
        T = 46
        return [f's_bfe_u32 s{S_KQ}, s2, 0x20001', f's_lshr_b32 s{S_N2}, s2, 5',
                f's_and_b32 s{S_R2}, s2, 1', f's_lshl_b32 s{S_R2}, s{S_R2}, 2', f's_bfe_u32 s{S_T1}, s2, 0x20003', f's_add_u32 s{S_R2}, s{S_R2}, s{S_T1}',
                f's_lshl_b32 s{S_R2}, s{S_R2}, 2', f's_add_u32 s{S_R2}, s{S_R2}, s{S_W}',
                f's_lshl_b32 s{S_T1}, s{S_KQ}, 10', f'v_lshl_add_u32 v{V2_A}, v{L}, 4, s{S_T1}'] + \
               [f'v_xor_b32 v{V2_A+p}, {p*1024}, v{V2_A}' for p in range(1, 4)] + \
               [f's_lshl_b32 s{S_KA}, s{S_R2}, 2', f's_add_u32 s{S_KA}, s{S_KA}, s{S_KQ}', f's_mul_i32 s{S_KA}, s{S_KA}, {44*4096}'] + \
               ([f's_add_u32 s{S_KA}, s{S_KA}, {WS_A2}'] if WS_A2 else []) + \
               [f'v_lshrrev_b32 v{T}, 4, v{L}', f'v_lshlrev_b32 v{T+1}, 1, v{T}', f'v_and_b32 v{T+2}, 15, v{L}', f'v_xor_b32 v{T+1}, v{T+1}, v{T+2}', f'v_lshlrev_b32 v{T+1}, 4, v{T+1}',
                f's_and_b32 s{S_T1}, s{S_W}, 1', f's_lshl_b32 s{S_T1}, s{S_T1}, 7', f's_add_u32 s{S_T1}, s{S_T1}, s{S_N2}', f's_lshl_b32 s{S_T1}, s{S_T1}, 8',
                f'v_lshl_add_u32 v{V2_D}, v{T}, 11, v{T+1}', f'v_add_u32 v{V2_D}, s{S_T1}, v{V2_D}', f'v_xor_b32 v{V2_D+1}, 128, v{V2_D}', f'v_add_u32 v{V2_D+1}, {4*2048}, v{V2_D+1}',
                f's_mul_i32 s{S_DA}, s{S_KQ}, {896*2048}', f's_lshr_b32 s{S_T1}, s{S_W}, 1', f's_mul_i32 s{S_DD}, s{S_T1}, {224*2048}', f's_add_u32 s{S_DD}, s{S_DD}, s{S_DA}',
                f's_lshl_b32 s{S_T1}, s{S_T1}, 18', f's_add_u32 s{S_DA}, s{S_DA}, s{S_T1}',
                f'v_and_b32 v{T+1}, 7, v{L}', f'v_xor_b32 v{T+1}, v{T+1}, v{T}', f'v_lshlrev_b32 v{T+1}, 4, v{T+1}', f'v_lshrrev_b32 v{T+3}, 3, v{L}',
                f's_lshl_b32 s{S_T1}, s{S_N2}, 2', f's_add_u32 s{S_T1}, s{S_T1}, s{S_W}', f's_lshl_b32 s{S_T1}, s{S_T1}, 16',
                f'v_lshl_add_u32 v{V2_C}, v{T+3}, 11, v{T+1}', f'v_add_u32 v{V2_C}, s{S_T1}, v{V2_C}', f'v_xor_b32 v{V2_C+1}, 64, v{V2_C}', f'v_add_u32 v{V2_C+1}, {8*2048}, v{V2_C+1}',
                f's_lshl_b32 s{S_DC}, s{S_KQ}, 9', f's_lshl_b32 s{S_LD}, s{S_W}, 12',
                f'v_subrev_u32 v{V2_RC}, {LDS_B}, v{V_BR}', f'v_xor_b32 v{V2_RC+1}, 64, v{V2_RC}']
    def g2_rd_setup(self):
        T = V2_RD + 1
        return [f'v_lshrrev_b32 v{T}, 2, v{L}', f'v_and_b32 v{T+1}, 7, v{T}', f'v_lshlrev_b32 v{T+1}, 5, v{T+1}', f'v_lshl_add_u32 v{T}, v{T}, 8, v{T+1}',
                f'v_and_b32 v{T+1}, 3, v{L}', f'v_lshl_add_u32 v{V2_RD}, v{T+1}, 3, v{T}'] + [f'v_xor_b32 v{V2_RD+nb}, {nb*32}, v{V2_RD}' for nb in range(1, 8)]
    def w_reads(self, s, nb):
        r = A2_W + nb*4; off = ((s >> 1) % 4)*16384; kk = s & 1
        if s < 28: return [f'ds_read_b64_tr_b16 a[{r}:{r+1}], v{V2_RD+nb} offset:{off + kk*8192}', f'ds_read_b64_tr_b16 a[{r+2}:{r+3}], v{V2_RD+nb} offset:{off + kk*8192 + 4096}']
        return [f'ds_read_b128 {a4(r)}, v{V2_RC+kk} offset:{off + nb*2048}']
    def w_dma(self, S, n):
        o = [f's_add_u32 m0, s{S_LD}, {(S % 4)*16384 + n*1024}']
        if S < 12: base, c, sr, va = S_DA, (224*(S & 3) + 32*(S >> 2) + 8*(n >> 1))*2048, SRD_WD, V2_D
        elif S < 14: base, c, sr, va = S_DD, (96 + 448*(S - 12) + 8*(n >> 1))*2048, SRD_WD, V2_D
        else: base, c, sr, va = S_DC, ((S - 14) >> 1)*128 + 16*(n >> 1)*2048, (SRD_CR, SRD_CI)[S & 1], V2_C
        if n % 2 == 0: o.append(f's_add_u32 s{S_T0}, s{base}, {c}')
        return tagged(o + [f'buffer_load_dwordx4 v{va+(n&1)}, {s4(sr)}, s{S_T0} offen lds'], ('W', S))
    def a_load(self, s, p):
        o = [f'buffer_load_dwordx4 {a4(A2_ACT + ((s % 4)*4 + p)*4)}, v{V2_A+p}, {WSR}, s{S_KA} offen sc1']
        if p == 3: o.append(f's_add_u32 s{S_KA}, s{S_KA}, 4096')
        return o
    def g2(self):
        S = Stream()
        for s in range(44):
            for k in range(8):
                g0 = len(S.m); w = a4(A2_W + k*4)
                for g, p in enumerate((0, 1, 2, 3) if k % 2 == 0 else (3, 2, 1, 0)):
                    a = p4(acc2(p, k))
                    S.mfma(f'v_mfma_f32_16x16x32_bf16 {a}, {w}, {a4(A2_ACT + ((s % 4)*4 + p)*4)}, {a if s else 0}', 1 if g == 3 else 0)
                rd = self.w_reads(s, k+5) if k < 3 else (self.w_reads(s+1, k-3) if s < 43 else [])
                for q, r in enumerate(rd): S.put(g0+q, r)
                if s + 3 < 44 and k % 2 == 0:
                    for q, x in enumerate(self.a_load(s+3, k//2)): S.put(g0+2+q, x)
                dm = None
                if s % 2 == 1 and k in (5, 7): dm = ((s >> 1) + 3, (k-5)//2)
                if s % 2 == 0 and s > 0 and k in (1, 3): dm = ((s >> 1) + 2, 2 + (k-1)//2)
                if dm and 4 <= dm[0] < 22:
                    it = self.w_dma(*dm)
                    for q, x in enumerate(it): S.put(g0 + 3 - len(it) + q, x)
                if s % 2 == 1 and k == 3 and s < 43:
                    S.pre[g0].append(I('s_barrier', need=[('W', (s >> 1) + 1)])); S.res[g0-1] += 1
        pos = lambda s, k=0: s*32 + k*4
        S.place(self.flag_items(1, 20, 21, S_T1), pos(2), pos(3))
        ldf = f'buffer_load_dword v23, v22, {WSR}, s{S_T2} offen sc1'
        S.place(self.poll_setup(1, 22, S_T2) + [ldf], pos(9), pos(10))
        S.place(self.guard(ldf, 'v_cmp_ne_u32 vcc, 1, v23'), pos(12, 4), pos(13))
        for a, b in self.final_prep(): S.place(a, pos(b[0]), pos(b[1]))
        S.emit(self.P)

    RES, XR, SR, DK, SEL = 64, 96, 112, 24, 28
    def final_prep(self):
        RES, XR, SR, DK, SEL = self.RES, self.XR, self.SR, self.DK, self.SEL
        a = [self.srd(SRD_OUT, P_OUT, 8388608),
             f's_lshl_b32 s{S_T1}, s{S_R2}, 6', f's_add_u32 s{S_T1}, s{S_T1}, s{S_KQ}', f'v_lshrrev_b32 v34, 5, v{L}', f'v_lshl_add_u32 v34, v34, 2, s{S_T1}',
             f's_lshl_b32 s{S_T1}, s{S_N2}, 8', f'v_and_b32 v35, 31, v{L}', f'v_lshl_add_u32 v35, v35, 3, s{S_T1}',
             'v_lshl_add_u32 v36, v34, 11, v35', 'v_lshlrev_b32 v37, 1, v36', 'v_lshlrev_b32 v34, 3, v34', f's_mov_b32 s{S_T1}, {WS_STATS}',
             f'global_load_dwordx2 {p2(DK+2)}, v35, {s2_(P_DSK)}']
        for n in range(8):
            a += [f'buffer_load_dwordx2 {p2(SR+2*n)}, v34, {WSR}, s{S_T1} offen offset:{64*n} sc1',
                  [f's_mov_b32 s{S_T2}, {n*8*2048}', f'buffer_load_dwordx2 {p2(XR+2*n)}, v36, {s4(SRD_X)}, s{S_T2} offen']]
        b = [f'v_lshlrev_b32 v{DK}, 16, v{DK+2}', f'v_and_b32 v{DK+1}, 0xffff0000, v{DK+2}', f'v_lshlrev_b32 v{DK+2}, 16, v{DK+3}', f'v_and_b32 v{DK+3}, 0xffff0000, v{DK+3}']
        for n in range(8):
            b.append(f'v_rcp_f32 v{SR+2*n+1}, v{SR+2*n+1}')
            for q in range(4):
                r = RES + 4*n + q
                b += [f'v_lshlrev_b32 v{r}, 16, v{XR+2*n+(q>>1)}' if q % 2 == 0 else f'v_and_b32 v{r}, 0xffff0000, v{XR+2*n+(q>>1)}',
                      f'v_add_f32 v38, v{r}, v{SR+2*n}', f'v_mul_f32 v39, v{SR+2*n+1}, v{DK+q}', f'v_fmac_f32 v{r}, v38, v39']
        c = [f'v_mov_b32 v{SEL}, 0', f'v_mov_b32 v{SEL+1}, 0', f'v_mov_b32 v{SEL+4}, 0', f'v_mov_b32 v{SEL+5}, 0',
             f'v_and_b32 v40, 1, v{L}', 'v_lshlrev_b32 v40, 4, v40', 'v_mov_b32 v41, 0x3f80', 'v_lshlrev_b32 v40, v40, v41',
             f'v_bfe_u32 v41, v{L}, 1, 3', f'v_lshrrev_b32 v42, 4, v{L}', 'v_lshlrev_b32 v42, 1, v42', 'v_xor_b32 v41, v41, v42',
             f'v_cmp_eq_u32 {s2_(S_MK)}, 0, v41', f'v_cmp_eq_u32 {s2_(S_MK+2)}, 1, v41',
             f'v_cndmask_b32 v{SEL+2}, 0, v40, {s2_(S_MK)}', f'v_cndmask_b32 v{SEL+3}, 0, v40, {s2_(S_MK+2)}',
             f'v_lshlrev_b32 v40, 4, v{L}',
             f's_lshl_b32 s{S_T1}, s{S_W}, 13', f's_add_u32 s{S_T1}, s{S_T1}, 65536',
             f'v_and_b32 v41, 15, v{L}', f'v_lshrrev_b32 v42, 4, v{L}', f'v_and_b32 v43, 7, v{L}', 'v_xor_b32 v42, v42, v43', 'v_lshlrev_b32 v42, 4, v42',
             'v_lshl_add_u32 v41, v41, 9, v42', f'v_add_u32 v41, s{S_T1}, v41', 'v_xor_b32 v42, 64, v41',
             f'v_lshrrev_b32 v43, 5, v{L}', f'v_xor_b32 v43, v43, v{L}', 'v_lshlrev_b32 v43, 4, v43', f'v_add_u32 v43, s{S_T1}, v43'] + \
            [f'v_xor_b32 v{43+q}, {32*q}, v43' for q in range(1, 4)] + \
            [f's_mul_i32 s{S_U0}, s{S_GW}, {3*4096}', f's_add_u32 s{S_U0}, s{S_U0}, {WS_XCH}',
             f's_lshl_b32 s{S_U1}, s{S_GW}, 6', f's_add_u32 s{S_U1}, s{S_U1}, {WS_XF}',
             f'v_and_b32 v47, 3, v{L}', 'v_max_u32 v47, 1, v47', 'v_lshlrev_b32 v47, 9, v47', f'v_xor_b32 v47, s{S_U1}, v47',
             'v_mov_b32 v48, 1', f'v_min_u32 v49, 1, v{L}', 'v_lshlrev_b32 v49, 30, v49']
        return [(a, (28, 31)), (c, (31, 34)), (b, (34, 43))]
    def final(self):
        e = self.e; RES, SEL = self.RES, self.SEL
        for p in (1, 2, 3):
            e(f's_xor_b32 s{S_T1}, s{S_GW}, {p << 3}\ns_mul_i32 s{S_T1}, s{S_T1}, {3*4096}\ns_add_u32 s{S_T1}, s{S_T1}, {WS_XCH + (p-1)*4096}')
            e('.p2align 3')
            for q in range(4):
                a, b = acc2(p, 2*q), acc2(p, 2*q+1)
                e(f'v_cvt_pk_bf16_f32 v{a}, v{a}, v{a+1}\nv_cvt_pk_bf16_f32 v{a+1}, v{a+2}, v{a+3}\nv_cvt_pk_bf16_f32 v{a+2}, v{b}, v{b+1}\nv_cvt_pk_bf16_f32 v{a+3}, v{b+2}, v{b+3}')
                e(f'buffer_store_dwordx4 {p4(a)}, v40, {WSR}, s{S_T1} offen offset:{q*1024} sc1')
        e(f's_waitcnt vmcnt(0)\nbuffer_store_dword v48, v49, {WSR}, s{S_U1} offen sc1')
        self.stamp()
        ldf = f'buffer_load_dword v50, v47, {WSR}, 0 offen sc1'
        e(ldf); self.flat(self.guard(ldf, 'v_cmp_ne_u32 vcc, 1, v50'))
        self.stamp()
        for p in range(3):
            for q in range(4): e(f'buffer_load_dwordx4 {a4(96+(p*4+q)*4)}, v40, {WSR}, s{S_U0} offen offset:{q*1024} sc1')
            if p < 2: e(f's_add_u32 s{S_U0}, s{S_U0}, 4096')
        for p in range(3):
            for q in range(4):
                for hb in range(2):
                    a = p4(acc2(0, 2*q+hb)); e(f'v_mfma_f32_16x16x32_bf16 {a}, {p4(SEL+2-2*hb)}, {a4(96+(p*4+q)*4)}, {a}')
        for nb in range(8): e(f'ds_write_b128 v{41+(nb&1)}, {p4(acc2(0, nb))} offset:{(nb>>1)*128}')
        for n in range(8): e(f'ds_read_b128 {p4(acc2(1, n))}, v{43+(n&3)} offset:{n*1024}')
        for n in range(8):
            a = acc2(1, n)
            e(f'v_pk_add_f32 {p2(a)}, {p2(a)}, {p2(RES+4*n)}\nv_pk_add_f32 {p2(a+2)}, {p2(a+2)}, {p2(RES+4*n+2)}')
            e(f's_mov_b32 s{S_T1}, {n*8*4096}\nbuffer_store_dwordx4 {p4(a)}, v37, {s4(SRD_OUT)}, s{S_T1} offen {self.cfg.get("opol", "sc1")}')

    def build(self, fname):
        e = self.e; cfg = self.cfg
        e('s_cmp_ge_u32 s2, 256\ns_cbranch_scc1 L_end')
        self.stamp(); self.prologue(); self.stamp()
        self.g1(); self.stamp()
        dm = [self.w_dma(S, n) for S in range(4) for n in range(4)]
        self.csread(0)
        self.ffn_block(0, dm[0:4]); self.ffn_block(1, dm[4:8])
        self.flat(self.ssm_loads())
        self.ffn_block(2, dm[8:12]); self.ffn_block(3, dm[12:16])
        self.stamp()
        self.ssm_part1()
        self.flat(self.flag_items(0, 12, 13, S_T1))
        self.stamp()
        self.ffn_block(4); self.ffn_block(5)
        e(self.ldag)
        ldf = f'buffer_load_dword v13, v12, {WSR}, s{S_XO} offen sc1'
        self.ffn_block(6, [self.poll_setup(0, 12, S_XO), [], [ldf]])
        self.stamp()
        m0 = self.guard(ldf, 'v_cmp_ne_u32 vcc, 1, v13') + [self.a_load(s, p) for s in range(3) for p in range(4)]
        m1 = self.g2_rd_setup() + [I('s_barrier', need=[('W', 0)])] + [self.w_reads(0, nb) for nb in range(5)]
        self.ssm_part2([m0, m1])
        self.stamp()
        self.g2(); self.stamp()
        self.final()
        if cfg.get('prof'):
            e('s_waitcnt vmcnt(0)'); self.stamp()
            e(f's_lshl_b32 s{S_T0}, s{S_GW}, 7\ns_add_u32 s{S_T0}, s{S_T0}, {WS_STAMP}')
            e('v_mov_b32 v19, 0\ns_mov_b64 exec, 1')
            for i in range(8): e(f'buffer_store_dwordx4 {a4(224+4*i)}, v19, {WSR}, s{S_T0} offen offset:{16*i}')
        e('L_end:\ns_endpgm')
        for x in self.slow: e(x)
        e('L_codeend:')
        K = NAME + '_kernel'
        txt = header([f'; @launch grid=(256,1,1) block=(256,1,1) lds={LDS_TOTAL}']) + kstart(K) + self.P.text() + RODATA + kdesc(K, 512, 256)
        open(fname, 'w').write(txt)

if __name__ == '__main__':
    Gen({}).build('k_v2.s')
    Gen({'prof': True}).build('k_v2p.s')
    Gen({'prof': True, 'ppol': 'nt'}).build('k_v2p_nt.s')
```

```python
import re

REG_RE = re.compile(r'^(-?)(?:abs\()?\|?([vas])(?:(\d+)|\[(\d+):(\d+)\])\|?\)?$')

def regs_of(tok):
    tok = tok.strip()
    if tok in ('vcc', 'vcc_lo', 'vcc_hi'): return [('vcc', 0)]
    if tok in ('exec', 'exec_lo', 'exec_hi'): return [('exec', 0)]
    if tok == 'm0': return [('m0', 0)]
    m = REG_RE.match(tok)
    if not m: return []
    c = m.group(2)
    if m.group(3) is not None: return [(c, int(m.group(3)))]
    return [(c, i) for i in range(int(m.group(4)), int(m.group(5)) + 1)]

TRANS = ('v_exp_f32', 'v_log_f32', 'v_rcp_f32', 'v_rsq_f32', 'v_sqrt_f32', 'v_sin_f32', 'v_cos_f32', 'v_rcp_iflag_f32')

class I:
    __slots__ = ('t', 'op', 'defs', 'uses', 'kind', 'tag', 'need', 'w_vm', 'w_lg', 'nops', 'dpp', 'srcc', 'wide', 'data', 'ldsdma', 'nocount', 'also')
    def __init__(self, t, tag=None, need=None):
        self.t = t.strip(); self.tag = tag; self.need = need or []
        self.w_vm = None; self.w_lg = None; self.nops = 0
        self.defs = []; self.uses = []; self.dpp = False; self.srcc = []; self.wide = False; self.data = []; self.ldsdma = False; self.nocount = '; nocount' in t; self.also = []
        s = self.t.split(';')[0].strip()
        if not s or s.endswith(':') or s.startswith('.'):
            self.op = ''; self.kind = 'x'; return
        p = s.split(None, 1)
        op = p[0]; self.op = op
        rest = p[1] if len(p) > 1 else ''
        toks = [x.strip() for x in rest.split(',')] if rest else []
        rest2 = re.sub(r'\s+(op_sel|op_sel_hi|neg_lo|neg_hi|quad_perm):\[[^\]]*\]', '', rest)
        toks = [x.strip() for x in rest2.split(',')] if rest2 else []
        mods = ''
        if toks:
            q = toks[-1].split(None, 1)
            toks[-1] = q[0]
            mods = q[1] if len(q) > 1 else ''
        R = [regs_of(x) for x in toks]
        flat = lambda l: [r for x in l for r in x]
        if op.startswith('v_mfma'):
            self.kind = 'mfma'; self.defs = R[0]; self.uses = flat(R[1:]); self.srcc = R[3]
        elif op.startswith('ds_'):
            self.kind = 'ds'
            if op.startswith('ds_read') or 'permute' in op or op.startswith('ds_swizzle'):
                self.defs = R[0]; self.uses = flat(R[1:])
            else: self.uses = flat(R)
        elif op.startswith('buffer_') or op.startswith('global_'):
            self.kind = 'vm'
            full = rest2
            if op.startswith('buffer_wbl2') or op.startswith('buffer_inv'): pass
            elif re.search(r'\blds\b', mods) or op.startswith('global_load_lds'):
                self.uses = flat(R) + [('m0', 0)]; self.ldsdma = True
            elif '_load_' in op:
                self.defs = [] if '; nodef' in t else R[0]; self.uses = flat(R[1:])
            elif '_atomic_' in op and re.search(r'\bsc0\b', mods):
                self.defs = R[0]; self.uses = flat(R if op.startswith('buffer') else R[1:])
            else:
                self.uses = flat(R)
                if op.endswith('x4') or op.endswith('x3'):
                    self.wide = True; self.data = R[0] if op.startswith('buffer') else R[1]
        elif op.startswith('s_load') or op.startswith('s_memtime') or op.startswith('s_memrealtime'):
            self.kind = 'smem'; self.defs = R[0]; self.uses = flat(R[1:])
        elif op.startswith('s_'):
            self.kind = 's'
            if op.startswith('s_cmp') or op.startswith('s_cbranch') or op.startswith('s_bitcmp') or op in ('s_waitcnt', 's_nop', 's_barrier', 's_branch', 's_endpgm', 's_sleep', 's_setprio'):
                self.uses = flat(R)
                if op.startswith('s_cbranch_vcc'): self.uses = [('vcc', 0)]
            else:
                self.defs = R[0] if R else []; self.uses = flat(R[1:])
                if 'saveexec' in op: self.defs = self.defs + [('exec', 0)]; self.uses.append(('exec', 0))
                if op.startswith('s_addk') or op.startswith('s_mulk'): self.uses += R[0]
        elif op.startswith('v_'):
            self.kind = 'v'
            self.dpp = '_dpp' in op
            if 'swap' in op:
                self.defs = flat(R); self.uses = flat(R)
            elif op.startswith('v_add_co') or op.startswith('v_sub_co') or op.startswith('v_addc_co') or op.startswith('v_subb_co') or op.startswith('v_mad_u64'):
                self.defs = R[0] + R[1]; self.uses = flat(R[2:])
            else:
                self.defs = R[0]; self.uses = flat(R[1:])
                if op.startswith('v_fmac') or op.startswith('v_dot2c') or self.dpp or op.startswith('v_writelane'): self.uses = self.uses + R[0]
        else:
            raise ValueError('unknown instr ' + t)

def opbase(op):
    return re.sub(r'_(e32|e64|dpp|sdwa)$', '', op)

class Prog:
    def __init__(self):
        self.segs = []
        self.cur = None
    def seg(self, bases=(0,)):
        self.cur = []; self.segs.append((self.cur, list(bases))); return self.cur
    def e(self, text, tag=None, need=None):
        lines = [l for l in text.split('\n') if l.strip()]
        for k, l in enumerate(lines):
            self.cur.append(I(l, tag if k == len(lines) - 1 else None, need if k == 0 else None))
    def add(self, items):
        self.cur.extend(items)
    def dyn(self):
        for items, bases in self.segs:
            for b in bases:
                for it in items: yield it, b
    def resolve_waits(self):
        def sim(final):
            cnt = {'vm': 0, 'lg': 0}; done = {'vm': 0, 'lg': 0}
            pend = {}; tags = {}; smem_out = False
            for it, b in self.dyn():
                if it.kind == 'x': continue
                needs = []
                for r in it.uses + it.defs + it.also:
                    if r in pend: needs.append(pend[r])
                for (nm, rel) in it.need:
                    key = (nm, b + rel)
                    if key in tags: needs += tags[key]
                    else: raise ValueError(f'tag {key} never issued (needed by {it.t})')
                for c in ('vm', 'lg'):
                    idx = max([n[1] for n in needs if n[0] == c], default=0)
                    cur = it.w_vm if c == 'vm' else it.w_lg
                    if idx > done[c]:
                        N = min(cnt[c] - idx, 63 if c == 'vm' else 15)
                        if c == 'lg' and smem_out: N = 0
                        if cur is None or N < cur:
                            assert not final, it.t
                            cur = N
                            if c == 'vm': it.w_vm = N
                            else: it.w_lg = N
                    if cur is not None:
                        done[c] = max(done[c], cnt[c] - cur)
                        if c == 'lg' and cur == 0: smem_out = False
                if it.op == 's_waitcnt' and '; maybe' not in it.t:
                    m = re.search(r'vmcnt\((\d+)\)', it.t)
                    if m: done['vm'] = max(done['vm'], cnt['vm'] - int(m.group(1)))
                    m = re.search(r'lgkmcnt\((\d+)\)', it.t)
                    if m:
                        if not smem_out or int(m.group(1)) == 0: done['lg'] = max(done['lg'], cnt['lg'] - int(m.group(1)))
                        if int(m.group(1)) == 0: smem_out = False
                c = {'vm': 'vm', 'ds': 'lg', 'smem': 'lg'}.get(it.kind)
                for r in it.defs: pend.pop(r, None)
                if c and not it.nocount:
                    cnt[c] += 1
                    if it.kind == 'smem': smem_out = True
                    for r in it.defs: pend[r] = (c, cnt[c])
                    if it.tag: tags.setdefault((it.tag[0], b + it.tag[1]), []).append((c, cnt[c]))
        sim(False); sim(False); sim(True)
    def resolve_hazards(self):
        changed = True
        while changed:
            changed = False
            hist = []
            pos = 0
            for it, b in self.dyn():
                if it.kind == 'x': continue
                pre = (1 if ((it.w_vm is not None or it.w_lg is not None) and it.op != 's_waitcnt') else 0) + it.nops
                here = pos + pre
                req = 0
                U = set(it.uses); D = set(it.defs)
                ob = opbase(it.op)
                for (p, ppos) in reversed(hist):
                    dist = here - ppos - 1
                    if dist >= 20: break
                    need = 0
                    PD = set(p.defs)
                    if p.kind == 'v':
                        vd = {r for r in PD if r[0] in 'va'}
                        sd = {r for r in PD if r[0] in ('s', 'vcc')}
                        if it.kind == 'mfma' and vd & U: need = max(need, 2)
                        if it.kind == 'v' and vd & U:
                            if it.dpp or 'permlane' in it.op: need = max(need, 2)
                            if ob in ('v_readfirstlane_b32', 'v_readlane_b32'): need = max(need, 1)
                            if opbase(p.op) in TRANS: need = max(need, 1)
                        if sd & U:
                            if it.kind == 'v': need = max(need, 4 if 'lane_b32' in it.op else 2)
                            if it.kind == 'vm': need = max(need, 5)
                            if it.kind in ('s', 'smem'): need = max(need, 2)
                        if it.kind == 'v' and ('vcc', 0) in sd and it.op.startswith('v_cndmask') and len(it.t.split(',')) == 3: need = max(need, 2)
                    if p.kind == 'mfma':
                        x8 = 4 if '32x32' in p.op else 0
                        if it.kind == 'mfma':
                            ab = set(it.uses) - set(it.srcc)
                            if PD & ab: need = max(need, 8 + x8)
                            if PD & set(it.srcc) and PD != set(it.srcc): need = max(need, 6 + x8)
                        elif it.kind in ('v', 'vm', 'ds'):
                            if PD & (U | D): need = max(need, 8 + x8)
                            if it.kind == 'v' and set(p.srcc) & D: need = max(need, 3 + x8)
                    if p.kind == 's' and ('m0', 0) in PD and it.ldsdma: need = max(need, 1)
                    if p.kind == 'vm' and p.wide and set(p.data) & D: need = max(need, 2)
                    if need > dist: req = max(req, need - dist)
                if req > 0:
                    it.nops += req; changed = True; here += req
                w = 1
                if it.op == 's_nop': w = int(it.t.split()[1], 0) + 1
                hist.append((it, here + w - 1)); pos = here + w
                if len(hist) > 24: hist.pop(0)
    def lines(self):
        self.resolve_waits(); self.resolve_hazards()
        out = []
        for items, _ in self.segs:
            for it in items:
                n = it.nops
                while n > 0:
                    k = min(n, 16); out.append(f's_nop {k-1}'); n -= k
                w = []
                if it.w_vm is not None: w.append(f'vmcnt({it.w_vm})')
                if it.w_lg is not None: w.append(f'lgkmcnt({it.w_lg})')
                if w:
                    if it.op == 's_waitcnt' and not any(x[:4] in it.t for x in w):
                        out.append(it.t + ' ' + ' '.join(w)); continue
                    out.append('s_waitcnt ' + ' '.join(w))
                out.append(it.t.split(';')[0].strip())
        return out
    def text(self):
        return '\n'.join(self.lines()) + '\n'

import subprocess, os, json
_SZ = {}
def sizes(lines):
    cache = '.sizes.json'
    if not _SZ and os.path.exists(cache): _SZ.update(json.load(open(cache)))
    todo = sorted({l for l in lines if l not in _SZ and not l.endswith(':') and not l.startswith('.') and 'L_' not in l})
    if todo:
        open('_sz.s', 'w').write('.amdgcn_target "amdgcn-amd-amdhsa--gfx950"\n.text\n' + '\n'.join(todo) + '\n')
        r = subprocess.run(['llvm-mc', '-triple=amdgcn-amd-amdhsa', '-mcpu=gfx950', '-show-encoding', '_sz.s'], capture_output=True, text=True)
        assert r.returncode == 0, r.stderr[:2000]
        enc = re.findall(r'encoding: \[([^\]]*)\]', r.stdout)
        assert len(enc) == len(todo)
        for l, x in zip(todo, enc): _SZ[l] = len(x.split(','))
        json.dump(_SZ, open(cache, 'w'))
    def sz(l):
        if l.endswith(':') or l.startswith('.'): return 0
        if 'L_' in l: return 4 if 'branch' in l else 8
        return _SZ[l]
    return sz

WIDEN = re.compile(r'^(v_(?:exp|rcp|sqrt|sin|cos|fract|add|mul|sub|max|min)_f32|v_mov_b32|v_(?:add|sub|subrev|min|max)_u32|v_(?:and|or|xor|lshlrev|lshrrev)_b32|v_fmac_f32) ')
def layout(lines, start_label, npages_cb, align=True):
    sz = sizes(lines)
    k0 = lines.index(start_label + ':')
    out = lines[:k0+1]; addr = 0; stubs = []; lastw = None
    body = lines[k0+1:]
    isreal = lambda l: not (l.endswith(':') or l.startswith('.'))
    gapn = [0]*len(body); st = 0; cnt = 0
    for q, l in enumerate(body + ['v_mfma']):
        if l.startswith('v_mfma'):
            for z in range(st, min(q+1, len(body))): gapn[z] = cnt
            st = q+1; cnt = 0
        elif isreal(l): cnt += 2 if opbase(l.split()[0]) in TRANS else 1
    extra = 0
    for q, l in enumerate(body):
        if l == '.p2align 3':
            if addr % 8: out.append('s_nop 0'); addr += 4
            continue
        n = sz(l)
        if n and addr >= 4096*len(stubs):
            stubs.append(len(out)); out.append(None); addr += 4; extra += 1
        if n == 8 and addr % 8 == 4:
            if align == 1 and addr % 32 == 28 and lastw is not None:
                idx, a = lastw
                if a // 32 == addr // 32 and a % 32 != 28:
                    op, rest = out[idx].split(' ', 1)
                    out[idx] = op + '_e64 ' + rest; addr += 4; lastw = None
            if align >= 2:
                if lastw is not None and lastw[1] == addr - 4:
                    op, rest = out[lastw[0]].split(' ', 1)
                    out[lastw[0]] = op + '_e64 ' + rest; addr += 4; lastw = None
                elif gapn[q] + extra < 2 or align == 3:
                    out.append('s_nop 0'); addr += 4; extra += 1
        if n == 4 and WIDEN.match(l) and '_dpp' not in l: lastw = (len(out), addr)
        out.append(l); addr += n
        if l.startswith('v_mfma'): extra = 0
    tgt = npages_cb(len(stubs))
    for p, idx in enumerate(stubs): out[idx] = f'L_pg{p}:\ns_cbranch_execz {tgt[p]}' if tgt[p] else 's_nop 0'
    return out, addr

def vr(c, b, n=1):
    return f'{c}{b}' if n == 1 else f'{c}[{b}:{b+n-1}]'


def slots(x):
    if x.kind == 'x': return 0
    w = 1 if x.need else 0
    if x.kind == 'v': return w + (2 if opbase(x.op) in TRANS else 1)
    if x.kind == 'ds':
        if x.op.startswith('ds_read'): return w + 2
        return w + {'ds_write_b64': 4, 'ds_write_b128': 6}.get(x.op, 3)
    if x.kind == 'vm':
        if '_load_' in x.op: return w + 3
        return w + (7 if x.op.endswith('x4') else 5 if x.op.endswith('x2') else 4)
    return w + 1
def overflow(items, res=0):
    t = 1; pv = False
    for x in items:
        if x.kind == 'x': continue
        if x.kind == 'v': t = max(t, 2)
        if x.kind in ('ds', 'vm') and pv: t += 1
        t += slots(x); pv = x.kind == 'v'
    return max(0, t + res - 4)

class Stream:
    V = None
    def __init__(self):
        self.m = []; self.pre = []; self.gap = []; self.res = []; self.jobs = []
        if Stream.V is None: Stream.V = I('v_mov_b32 v0, v0')
    def mfma(self, t, reserve=0):
        self.m.append(I(t)); self.pre.append([]); self.gap.append([]); self.res.append(reserve); return len(self.m) - 1
    def put(self, k, x): self.gap[k].append(x if isinstance(x, I) else I(x))
    def extra(self, k, g): return overflow(self.gap[k] + g, self.res[k]) - overflow(self.gap[k], self.res[k])
    def place(self, items, lo, hi, **kw):
        self.jobs.append((items, lo, hi, kw))
    def flush(self):
        def flat(x):
            if isinstance(x, str): return x.split('\n')
            if isinstance(x, I): return [x.t]
            return [z for y in x for z in flat(y)]
        def key(j):
            l = flat(j[0]); return (len(l) > 100, -sum(x.startswith(('buffer', 'global', 'ds_')) for x in l)/len(l))
        for items, lo, hi, kw in sorted(self.jobs, key=key): self.place_now(items, lo, hi, **kw)
        self.jobs = []
    def place_now(self, items, lo, hi, dense=False, vsp=4, win=10):
        groups = []
        for x in items:
            if isinstance(x, str):
                for l in x.split('\n'):
                    if l.strip(): groups.append([I(l)])
            elif isinstance(x, I): groups.append([x])
            else: groups.append([y if isinstance(y, I) else I(y) for y in x])
        free = [k for k in range(lo, hi) for n in (1, 2) if self.extra(k, [self.V]*n) == 0]
        if not free: free = [lo]
        wt = lambda g: sum(min(2, slots(y)) for y in g)
        need = sum(wt(g) for g in groups)
        if need > len(free): print(f'   note: tight: need {need} have {len(free)} in [{lo},{hi})')
        used = 0; k = lo
        for n, g in enumerate(groups):
            idx = used if dense else (used * len(free)) // max(need, 1)
            k = max(k, free[min(idx, len(free) - 1)] if not dense else k)
            vm = any(y.kind == 'vm' for y in g)
            rest = need - used - wt(g)
            last = free[max(0, len(free) - 1 - rest)] if rest < len(free) else k
            cand = range(k, max(k + 1, min(hi, k + win, last + 1)))
            def cost(q):
                c = self.extra(q, g)
                if vm and any(y.kind == 'vm' for z in range(max(0, q-vsp+1), min(len(self.m), q+vsp)) for y in self.gap[z]): c += 2
                return (c, q)
            k = min(cand, key=cost)
            self.gap[k] += g
            used += wt(g)
        return k
    def total_overflow(self, lo, hi): return sum(overflow(self.gap[k], self.res[k]) for k in range(lo, hi))
    def emit(self, P):
        self.flush()
        for k in range(len(self.m)):
            P.add(self.pre[k]); P.add([self.m[k]]); P.add(self.gap[k])
```

```python
import sys
from asmlib import I, overflow
n = 0; over = {}; show = int(sys.argv[2]) if len(sys.argv) > 2 else -1; buf = []
for l in open(sys.argv[1]):
    l = l.strip()
    if not l or l.endswith(':') or l.startswith('.') or l.startswith(';'): continue
    if l.startswith('v_mfma_f32_16x16x32'):
        st = (n-1)//144 if n <= 2304 else 16 + (n-1-2304)//128
        if n and len(buf) < 200:
            its = []
            for x in buf:
                its += [I('s_nop 0')]*(int(x.split()[1])+1) if x.startswith('s_nop') else [I(x)]
            o = overflow(its)
            over[st] = over.get(st, 0) + o
            if st == show and o: print(n % 144, o, buf)
        n += 1; buf = []
    else: buf.append(l)
print('overflow slots', over, 'G1', sum(v for k, v in over.items() if k < 16), 'G2', sum(v for k, v in over.items() if k >= 16))
```

```python
import sys, struct, math
sys.path.insert(0, 'bench')
from asmlib import *
from gen_common import *
def f2u(x): return struct.unpack('<I', struct.pack('<f', x))[0]
def fh(x): return hex(f2u(x))
p2 = lambda x: f'v[{x}:{x+1}]'
p4 = lambda x: f'v[{x}:{x+3}]'
a4 = lambda x: f'a[{x}:{x+3}]'
s4 = lambda x: f's[{x}:{x+3}]'
s2_ = lambda x: f's[{x}:{x+1}]'

LDS_X, LDS_W, LDS_B, LDS_MISC, LDS_TOTAL = 0, 65536, 122880, 139264, 163840
L_CSP = LDS_MISC; L_CSUM = LDS_MISC + 8192; L_HT = LDS_MISC + 9216; L_ST = LDS_MISC + 17408
S_W, S_M, S_J, S_R = 3, 4, 5, 6
SRD_X, SRD_W, SRD_B, SRD_WS, SRD_OUT, SRD_WD, SRD_CR, SRD_CI, SRD_T = 8, 12, 16, 20, 24, 28, 32, 36, 40
S_T0, S_T1, S_T2, S_T3, S_CNT = 44, 45, 46, 47, 48
S_LX, S_LW, S_LB = 49, 50, 51
S_KQ, S_N2, S_R2, S_GW = 52, 53, 54, 55
S_MK = 56
S_XO, S_BO, S_U0, S_U1 = 60, 61, 62, 63
KA = 64
P_X, P_LRE, P_LIM, P_BRE, P_BIM, P_CRE, P_CIM, P_LDT = [KA + 2*i for i in range(8)]
P_DSK, P_BX, P_WG, P_WU, P_WD, P_OUT, P_DBG, P_WS = [KA + 16 + 2*i for i in range(8)]
S_FL = P_WG
V_PF = 63
S_PC = P_BX
S_KX, S_KW, S_KB, S_KP = 98, 99, 100, 101
S_DA, S_DD, S_DC, S_KA, S_LD = 98, 99, 100, 101, 7
WS_A2 = 0; WS_XCH = 32 << 20; WS_STATS = 24 << 20; WS_BS = WS_STATS + 16384
WS_CS = 25 << 20; WS_AGG = 26 << 20; WS_FLAG = 27 << 20; WS_XF = 28 << 20; WS_STAMP = 200 << 20
WSR = s4(SRD_WS)
OOB = 0x7ff00000
SPIN_MAX = 200000
L = 1
V_XD, V_BD, V_WD, V_XR, V_BR, V_WR, V_PA, V_DUM = 2, 4, 6, 13, 15, 17, 18, 19
V_U, V_SA, V_L16, V_XC, V_BC, V_SX, V_D4, V_CS, V_PD, V_T = 20, 22, 23, 24, 28, 32, 36, 40, 48, 56
def acc_ffn(mat, b, tb):
    if b < 6: return ('v', 64 + ((b*2 + mat)*4 + tb)*4)
    return ('a', (mat*4 + tb)*4)
def acc_ssm(c, b, tb): return ('a', 32 + ((c*2 + b)*4 + tb)*4)
def r4(x): return f'{x[0]}[{x[1]}:{x[1]+3}]'
A_XF, A_RING, A_DK, A_PR, A_SC, A_XR = 96, 128, 152, 154, 192, 224
BLOCKS = [('s', 0, 0), ('s', 0, 1), ('s', 1, 0), ('s', 1, 1)] + [('f', mat, b) for b in range(7) for mat in range(2)]
K0 = -2*math.sqrt(2/math.pi)*math.log2(math.e); K1 = K0*0.044715
LOG2E = math.log2(math.e)
V2_A, V2_D, V2_C, V2_RC, V2_RD = 2, 6, 8, 10, 12
V2_RCH, V2_RDH = 3, 52
NS = 8
A2_ACT, A2_W = 96, 160
def acc2(p, nb): return 128 + (p*8 + nb)*4
V_LATE = 128
SLOT = (0, 16384, 65536, 32768, 49152, 81920, 98304, 114688)
NT = 8
def tact(s, tb):
    r = ((s - 44 + NT)*4 + tb)*4
    return r if r < 96 else r + 96

def tagged(lines, tag):
    it = [I(x) for x in lines]
    for x in it:
        if x.kind == 'vm': x.tag = tag
    return it

class Gen:
    def __init__(self, cfg):
        self.cfg = cfg; self.P = Prog(); self.P.seg(); self.slow = []; self.nl = 0; self.nst = 0; self.batches = {}; self.vpf = V_DUM; self.vpd = V_D4+3; self.late = []
    def e(self, *a, **k): self.P.e(*a, **k)
    def lab(self, p): self.nl += 1; return f'L_{p}{self.nl}'
    def stamp_items(self, cls='main'):
        if not self.cfg.get('prof'): return []
        if self.nst and self.cfg.get('pcls', 'main') != cls: return []
        k = self.nst; self.nst += 1
        assert k < 16
        c = 0 if k else 60
        return [['s_memrealtime s[96:97]', f's_memtime s[{c}:{c+1}]', 's_waitcnt lgkmcnt(0)', 's_and_b32 s96, s96, 0x3fff', f's_lshl_b32 s97, s{c}, 14', 's_or_b32 s96, s96, s97', f'v_accvgpr_write_b32 a{240+k}, s96']]
    def stamp(self, cls='main'):
        for g in self.stamp_items(cls):
            for x in g: self.e(x)
    def srd(self, d, ptr, nbytes):
        return f's_mov_b32 s{d}, s{ptr}\ns_mov_b32 s{d+1}, s{ptr+1}\ns_mov_b32 s{d+2}, {nbytes}\ns_mov_b32 s{d+3}, 0x20000'
    def guard(self, load, check):
        sl, bk, lp = self.lab('slow'), self.lab('back'), self.lab('lp')
        self.slow.append(f'{sl}:\ns_mov_b32 s{S_CNT}, {SPIN_MAX}\n{lp}:\ns_waitcnt vmcnt(0)\ns_nop 7\n{load}\ns_waitcnt vmcnt(0)\n{check}\n'
                         f's_cbranch_vccz {bk}\ns_sleep 1\ns_sub_u32 s{S_CNT}, s{S_CNT}, 1\ns_cmp_lg_u32 s{S_CNT}, 0\ns_cbranch_scc1 {lp}\ns_branch {bk}')
        return [x for x in check.split('\n')] + [[f's_cbranch_vccnz {sl}', f'{bk}:']]
    def flat(self, items):
        for x in items:
            if isinstance(x, str): self.e(x)
            elif isinstance(x, I): self.P.add([x])
            else: self.flat(x)
    @staticmethod
    def maxchk(t, base, n):
        o = [f'v_max_u32 v{t}, v{base}, v{base+1}']
        for k in range(2, n, 2): o.append(f'v_max3_u32 v{t}, v{t}, v{base+k}, v{base+k+1}')
        return '\n'.join(o + [f'v_cmp_eq_u32 vcc, -1, v{t}'])

    def frag_reads(self, k, kk, slot):
        ty, c, b = BLOCKS[k]; r = A_RING + (k % 6)*4
        if ty == 's': return [f'ds_read_b128 {a4(r)}, v{V_BR+kk} offset:{slot*8192 + (c*2+b)*2048}']
        off = slot*28672 + c*14336 + kk*7168 + b*32
        return [f'ds_read_b64_tr_b16 a[{r}:{r+1}], v{V_WR} offset:{off}', f'ds_read_b64_tr_b16 a[{r+2}:{r+3}], v{V_WR} offset:{off + 1792}']
    def x_read(self, tb, kk, slot):
        return f'ds_read_b128 {a4(A_XF + (kk*4 + tb)*4)}, v{V_XR+kk} offset:{slot*32768 + tb*2048}'
    def dma_x(self, n, s):
        tb, half = n >> 1, n & 1
        o = [f's_add_u32 m0, s{S_LX}, {(s & 1)*32768 + tb*2048 + half*1024}']
        if half == 0: o.append(f's_mov_b32 s{S_KX}, {s*128 + tb*2048}')
        return tagged(o + [f'buffer_load_dwordx4 v{V_XD+half}, {s4(SRD_X)}, s{S_KX} offen lds'], ('X', s))
    def dma_s(self, n, s):
        pol = self.cfg.get('wpol', '')
        if n < 7:
            o = [f's_add_u32 m0, s{S_LW}, {(s & 1)*28672 + n*1024}']
            if n == 0: o.append(f's_mov_b32 s{S_KW}, {s*64*7168}')
            return tagged(o + [f'buffer_load_dwordx4 v{V_WD+n}, {s4(SRD_W)}, s{S_KW} offen {pol} lds'], ('S', s))
        half = n - 7
        o = [f's_add_u32 m0, s{S_LB}, {(s & 1)*8192 + half*1024}']
        if half == 0: o.append(f's_mov_b32 s{S_KB}, {s*128}')
        return tagged(o + [f'buffer_load_dwordx4 v{V_BD+half}, {s4(SRD_B)}, s{S_KB} offen lds'], ('S', s))
    def cs_load(self, dst, s):
        return [f's_mov_b32 s{S_KP}, {s*64*7168}', f'buffer_load_dwordx4 {p4(dst)}, v{V_PA}, {s4(SRD_W)}, s{S_KP} offen {self.cfg.get("ppol","")}']
    def cs_accum(self, src):
        o = []; t = V_U
        for k in range(4):
            o += [f'v_lshlrev_b32 v{t}, 16, v{src+k}', f'v_and_b32 v{t+1}, 0xffff0000, v{src+k}',
                  f'v_add_f32 v{V_CS+2*k}, v{V_CS+2*k}, v{t}', f'v_add_f32 v{V_CS+2*k+1}, v{V_CS+2*k+1}, v{t+1}']
        return o
    def w_addr(self, n):
        T = V_T
        return (f'v_add_u32 v{T}, {64*n}, v{L}\nv_mul_u32_u24 v{T+1}, 4682, v{T}\nv_lshrrev_b32 v{T+1}, 16, v{T+1}\n'
                f'v_mul_u32_u24 v{T+2}, 14, v{T+1}\nv_sub_u32 v{T+2}, v{T}, v{T+2}\n'
                f'v_add_u32 v{T+3}, s{S_T2}, v{T+2}\nv_lshl_add_u32 v{T+4}, v{T+2}, 1, s{S_T3}\n'
                f'v_cmp_gt_u32 vcc, 12, v{T+2}\nv_lshrrev_b32 v{T}, 1, v{T+1}\nv_xor_b32 v{T}, v{T}, v{T+1}\nv_cndmask_b32 v{T+3}, v{T+4}, v{T+3}, vcc\n'
                f'v_and_b32 v{T}, 4, v{T}\nv_mul_u32_u24 v{T}, 3, v{T}\nv_xor_b32 v{T}, v{T}, v{T+1}\n'
                f'v_mul_u32_u24 v{T}, 7168, v{T}\nv_lshl_add_u32 v{T}, v{T+3}, 4, v{T}\nv_add_u32 v{V_WD+n}, s{S_T1}, v{T}')

    def touch(self, b, hops=1):
        self.batches[b] = hops
        o = ['s_mov_b64 exec, 0']
        for w in range(1, 4): o += [f's_cmp_eq_u32 s{S_W}, {w}', f's_cbranch_scc1 L_pg{4*b+w}']
        return o + [f's_branch L_pg{4*b}', f'L_ret{b}:', 's_mov_b64 exec, -1']
    def code_pf(self, off, st=S_U0):
        return [f's_lshr_b32 s{st}, s2, 3', f's_lshl_b32 s{st}, s{st}, 2', f's_add_u32 s{st}, s{st}, s{S_W}', f's_lshl_b32 s{st}, s{st}, 7',
                f's_add_u32 s{st}, s{st}, {off}', f's_min_u32 s{st}, s{st}, L_codeend-L_main-4',
                f'v_mov_b32 v{self.vpf}, s{st}', f'global_load_dword v{self.vpd}, v{self.vpf}, {s2_(S_PC)} ; nodef']

    def prologue(self):
        e = self.e; T = V_T; cfg = self.cfg
        assert all(((u*4682) >> 16) == u//14 for u in range(448))
        e(f's_load_dwordx16 s[{KA}:{KA+15}], s[0:1], 0\ns_load_dwordx16 s[{KA+16}:{KA+31}], s[0:1], 64')
        e(f's_getpc_b64 s[96:97]\nL_pc:\ns_add_u32 s96, s96, L_main-L_pc\ns_addc_u32 s97, s97, 0')
        e(f'v_lshrrev_b32 v{T}, 6, v0\ns_lshr_b32 s{S_T0}, s2, 3\ns_lshl_b32 s{S_T0}, s{S_T0}, 7\nv_lshl_add_u32 v{T+1}, v{T}, 12, s{S_T0}')
        e(f'v_bfe_u32 v{T+2}, v0, 4, 2\nv_min_u32 v{T+2}, {cfg.get("h0", 3) - 1}, v{T+2}\nv_lshl_add_u32 v{T+1}, v{T+2}, 14, v{T+1}')
        e(f'global_load_dword v{V_DUM}, v{T+1}, s[96:97] ; nodef')
        e(f'v_and_b32 v{L}, 63, v0\nv_readfirstlane_b32 s{S_W}, v{T}')
        e(f's_bfe_u32 s{S_M}, s2, 0x30003\ns_lshr_b32 s{S_T0}, s2, 6\ns_and_b32 s{S_J}, s2, 7\ns_lshl_b32 s{S_J}, s{S_J}, 2\ns_add_u32 s{S_J}, s{S_J}, s{S_T0}')
        e(f's_lshl_b32 s{S_R}, s{S_M}, 2\ns_add_u32 s{S_R}, s{S_R}, s{S_W}')
        e(f'v_and_b32 v{T+5}, 7, v{L}\nv_lshrrev_b32 v{T+6}, 4, v{L}\nv_xor_b32 v{T+5}, v{T+5}, v{T+6}\nv_lshlrev_b32 v{T+5}, 4, v{T+5}\nv_lshrrev_b32 v{T+6}, 3, v{L}')
        e(f's_lshl_b32 s{S_T0}, s{S_R}, 17\nv_lshl_add_u32 v{V_XD}, v{T+6}, 13, v{T+5}\nv_add_u32 v{V_XD}, s{S_T0}, v{V_XD}')
        e(f'v_xor_b32 v{V_XD+1}, 64, v{V_XD}\nv_add_u32 v{V_XD+1}, {32*2048}, v{V_XD+1}')
        e(f's_lshr_b32 s{S_U0}, s{S_W}, 1\ns_and_b32 s{S_U1}, s{S_W}, 1')
        e(f's_lshl_b32 s{S_T0}, s{S_J}, 1\ns_add_u32 s{S_T0}, s{S_T0}, s{S_U0}\ns_lshl_b32 s{S_T0}, s{S_T0}, 15')
        e(f'v_lshl_add_u32 v{V_BD}, v{T+6}, 11, v{T+5}\nv_add_u32 v{V_BD}, s{S_T0}, v{V_BD}')
        e(f'v_xor_b32 v{V_BD+1}, 64, v{V_BD}\nv_add_u32 v{V_BD+1}, {8*2048}, v{V_BD+1}')
        e(f's_mul_i32 s{S_T1}, s{S_U0}, {32*7168}\ns_lshr_b32 s{S_T0}, s{S_J}, 1\ns_mul_i32 s{S_T0}, s{S_T0}, 448\ns_add_u32 s{S_T1}, s{S_T1}, s{S_T0}')
        e(f's_and_b32 s{S_T3}, s{S_J}, 1\ns_lshl_b32 s{S_T2}, s{S_T3}, 4\ns_sub_u32 s{S_T3}, s{S_T3}, 12')
        e(self.w_addr(0))
        e(f's_mul_i32 s{S_T0}, s{S_U0}, -28\ns_lshl_b32 s{S_KP}, s{S_M}, 3\ns_add_u32 s{S_T0}, s{S_T0}, s{S_KP}\ns_mul_i32 s{S_T0}, s{S_T0}, 7168\nv_add_u32 v{V_PA}, s{S_T0}, v{V_WD}')
        e(f's_lshl_b32 s{S_LX}, s{S_W}, 13')
        e(f's_lshl_b32 s{S_LB}, s{S_U1}, 12\ns_lshl_b32 s{S_T0}, s{S_U0}, 11\ns_add_u32 s{S_LB}, s{S_LB}, s{S_T0}\ns_add_u32 s{S_LB}, s{S_LB}, {LDS_B}')
        e(f's_mov_b32 s{SRD_X+2}, 4194304\ns_mov_b32 s{SRD_X+3}, 0x20000\ns_mov_b32 s{SRD_W+2}, 7340032\ns_mov_b32 s{SRD_W+3}, 0x20000\ns_mov_b32 s{SRD_B+2}, 2097152\ns_mov_b32 s{SRD_B+3}, 0x20000')
        e(f's_lshr_b32 s{S_XO}, s2, 6\ns_lshl_b32 s{S_XO}, s{S_XO}, 11')
        e(f's_cmp_eq_u32 s{S_U1}, 1\ns_waitcnt lgkmcnt(0)')
        e(f's_cselect_b64 {s2_(SRD_W)}, {s2_(P_WU)}, {s2_(P_WG)}\ns_cselect_b64 {s2_(SRD_B)}, {s2_(P_BIM)}, {s2_(P_BRE)}\ns_mov_b64 {s2_(SRD_X)}, {s2_(P_X)}\ns_mov_b64 {s2_(S_PC)}, s[96:97]')
        self.stamp('pro')
        def x0(n):
            tb, half = n >> 1, n & 1
            if half == 0: e(f's_xor_b32 s{S_KX}, s{S_XO}, {tb*2048}\ns_add_u32 m0, s{S_LX}, s{S_KX}')
            else: e(f's_add_u32 m0, m0, 1024')
            e(f'buffer_load_dwordx4 v{V_XD+half}, {s4(SRD_X)}, s{S_KX} offen lds', tag=('X', 0))
        ldx = f'buffer_load_dwordx4 {p4(V_XC)}, v{V_SA}, {s4(SRD_X)}, s{P_WU} offen'
        ldb = f'buffer_load_dwordx4 {p4(V_BC)}, v{V_SA}, {s4(SRD_B)}, s{P_WU+1} offen'
        po = cfg.get('po', 0)
        self.flat(self.cs_load(V_PD+4, 0))
        x0(0); x0(1)
        e(f'v_lshlrev_b32 v{V_L16}, 4, v{L}\nv_lshrrev_b32 v{V_SA}, 5, v{L}\nv_mul_u32_u24 v{V_SA}, {2048-512}, v{V_SA}\nv_add_u32 v{V_SA}, v{V_SA}, v{V_L16}')
        e(f's_lshl_b32 s{P_WU+1}, s{S_J}, 3\ns_add_u32 s{P_WU+1}, s{P_WU+1}, s{S_M}\ns_lshl_b32 s{P_WU+1}, s{P_WU+1}, 1\ns_add_u32 s{P_WU+1}, s{P_WU+1}, s{S_U0}\ns_lshl_b32 s{P_WU+1}, s{P_WU+1}, 12')
        if po in (0, 1): e(ldb)
        else:
            for n in (7, 8): self.flat(self.dma_s(n, 0))
        e(f's_lshl_b32 s{P_WU}, s{S_M}, 5\ns_add_u32 s{P_WU}, s{P_WU}, s{S_J}\ns_lshl_b32 s{P_WU}, s{P_WU}, 2\ns_add_u32 s{P_WU}, s{P_WU}, s{S_W}\ns_lshl_b32 s{P_WU}, s{P_WU}, 12')
        self.flat(self.cs_load(V_SX, 1))
        if po == 0: e(ldx)
        e(f'v_and_b32 v{V_U}, 15, v{L}\ns_lshl_b32 s{S_T0}, s{S_J}, 5\nv_add_lshl_u32 v{V_U}, v{V_U}, s{S_T0}, 1')
        e(f's_lshr_b32 s{S_T0}, s2, 5\ns_lshl_b32 s{S_T0}, s{S_T0}, 8\ns_and_b32 s{S_BO}, s2, 6\ns_lshl_b32 s{S_BO}, s{S_BO}, 5\ns_add_u32 s{S_T0}, s{S_T0}, s{S_BO}')
        e(f'v_and_b32 v{V_U+1}, 7, v{L}\nv_lshl_add_u32 v{V_U+1}, v{V_U+1}, 3, s{S_T0}')
        small = [f'global_load_ushort a{A_PR+2*k+b}, v{V_U}, {s2_(p)} offset:{32*b}' for k, p in enumerate((P_LRE, P_LIM, P_LDT)) for b in range(2)]
        small.append(f'global_load_dwordx2 a[{A_DK}:{A_DK+1}], v{V_U+1}, {s2_(P_DSK)}')
        self.stamp('pro')
        for k in range(4): e(f'v_mov_b32 v{V_PD+k}, 0')
        if cfg.get('x_b'): e(f'v_mov_b32 v{V_PD}, {hex(f2u(math.sqrt(cfg["x_b"]/2)) >> 16)}')
        zero = [f'v_mfma_f32_32x32x16_bf16 v[{r}:{r+15}], {p4(V_PD)}, {p4(V_PD)}, {cfg.get("x_b1", 0)}' for r in range(64, 256, 16)] + \
               [f'v_mfma_f32_32x32x16_bf16 a[{r}:{r+15}], {p4(V_PD)}, {p4(V_PD)}, {cfg.get("x_b1", 0)}' for r in range(0, 96, 16)]
        e(f's_mul_i32 s{S_LW}, s{S_U1}, 14336\ns_mul_i32 s{S_T0}, s{S_U0}, 7168\ns_add_u32 s{S_LW}, s{S_LW}, s{S_T0}\ns_add_u32 s{S_LW}, s{S_LW}, {LDS_W}')
        for n in range(1, 7):
            for q, l in enumerate(self.w_addr(n).split('\n')):
                if q % 6 == 0: e(zero.pop())
                if q % 8 == 3 and small: e(small.pop())
                e(l)
        assert not zero
        self.stamp('pro')
        if cfg.get('t0', 1) == 0: self.flat(self.touch(0, cfg.get('h0', 3)))
        self.stamp('pro')
        for n in range(2, 8): x0(n)
        for n in range(7): self.flat(self.dma_s(n, 0))
        if po in (0, 1):
            for n in (7, 8): self.flat(self.dma_s(n, 0))
        if po == 2: e(ldb)
        if po in (1, 2): e(ldx)
        self.stamp('pro')
        e(f'v_and_b32 v{T}, 15, v{L}\nv_lshrrev_b32 v{T+1}, 1, v{T}\nv_lshrrev_b32 v{T+2}, 4, v{L}\nv_xor_b32 v{T+1}, v{T+1}, v{T+2}')
        e(f'v_lshlrev_b32 v{T+1}, 4, v{T+1}\nv_lshl_add_u32 v{T}, v{T}, 7, v{T+1}')
        e(f'v_add_u32 v{V_XR}, s{S_LX}, v{T}\nv_xor_b32 v{V_XR+1}, 64, v{V_XR}\nv_add_u32 v{V_BR}, {LDS_B}, v{T}\nv_xor_b32 v{V_BR+1}, 64, v{V_BR}')
        e(f'v_lshrrev_b32 v{T}, 5, v{L}\nv_lshlrev_b32 v{T}, 4, v{T}\nv_bfe_u32 v{T+1}, v{L}, 2, 3\nv_add_u32 v{T}, v{T}, v{T+1}')
        e(f'v_mul_u32_u24 v{T}, 224, v{T}\nv_and_b32 v{T+1}, 3, v{L}\nv_lshl_add_u32 v{T}, v{T+1}, 3, v{T}\nv_add_u32 v{V_WR}, {LDS_W}, v{T}')
        if cfg.get('t0', 1) == 1: self.flat(self.touch(0, cfg.get('h0', 3)))
        self.stamp('pro')
        for n in range(cfg.get('x1pro', 8)): self.flat(self.dma_x(n, 1))
        if cfg.get('t0', 1) == 2: self.flat(self.touch(0, cfg.get('h0', 3)))
        self.stamp('pro')
        e('s_branch L_main\n.p2align 12\nL_main:')
        e('s_barrier', need=[('S', 0), ('X', 0)])
        self.stamp('pro')
        for tb in range(4): e(self.x_read(tb, 0, 0))
        for k in range(5):
            for r in self.frag_reads(k, 0, 0): e(r)

    def late_setup(self):
        return [f's_mov_b64 {s2_(S_XO)}, {s2_(P_WU)}'] + [f'v_mov_b32 v{V_CS+k}, 0' for k in range(8)] + self.cs_accum(V_PD+4) + self.cs_accum(V_SX) + [f'v_mov_b32 v{V_SX+k}, 0' for k in range(3)]
    def clears(self):
        A, B, C = V_T, 63, 62; t0, t1 = S_T1, S_T2; tg = ('CLR', 0)
        o = self.srd(SRD_WS, P_WS, 268435456).split('\n')
        o += [f's_lshl_b32 s{S_GW}, s2, 2', f's_add_u32 s{S_GW}, s{S_GW}, s{S_W}',
              f's_lshl_b32 s{t0}, s{S_J}, 3', f's_add_u32 s{t0}, s{t0}, s{S_M}',
              f'v_mov_b32 v{A}, -1', f'v_lshlrev_b32 v{B}, 2, v0', f'v_lshlrev_b32 v{C}, 2, v{L}',
              f's_lshl_b32 s{t0}, s{t0}, 10', f's_add_u32 s{t0}, s{t0}, {WS_CS}',
              I(f'buffer_store_dword v{A}, v{B}, {WSR}, s{t0} offen sc1', tag=tg),
              f's_lshl_b32 s{t0}, s{S_J}, 5', f's_sub_u32 s{t0}, s{t0}, s{S_R}', f's_lshl_b32 s{t0}, s{t0}, 8', f's_add_u32 s{t0}, s{t0}, {WS_AGG + 31*256}',
              I(f'buffer_store_dword v{A}, v{C}, {WSR}, s{t0} offen sc1', tag=tg),
              f's_lshl_b32 s{S_FL}, s{S_GW}, 7', f's_add_u32 s{S_FL}, s{S_FL}, {WS_FLAG}', f'v_lshrrev_b32 v{B}, 3, v{L}', f'v_lshlrev_b32 v{B}, 17, v{B}', f'v_and_b32 v{C}, 7, v{L}', f'v_lshl_add_u32 v{B}, v{C}, 4, v{B}',
              f'v_mov_b32 v{A+1}, -1', f'v_mov_b32 v{A+2}, -1', f'v_mov_b32 v{A+3}, -1',
              I(f'buffer_store_dwordx4 {p4(A)}, v{B}, {WSR}, s{S_FL} offen sc1', tag=tg)]
        return o
    def late_setup2(self):
        o = []
        for d, p, n in ((SRD_WD, P_WD, 7340032), (SRD_CR, P_CRE, 2097152), (SRD_CI, P_CIM, 2097152), (SRD_T, P_DBG, 256)): o += self.srd(d, p, n).split('\n')
        o += [f's_bfe_u32 s{S_KQ}, s2, 0x20001', f's_lshr_b32 s{S_N2}, s2, 5',
                f's_and_b32 s{S_R2}, s2, 1', f's_lshl_b32 s{S_R2}, s{S_R2}, 2', f's_bfe_u32 s{S_T1}, s2, 0x20003', f's_add_u32 s{S_R2}, s{S_R2}, s{S_T1}',
                f's_lshl_b32 s{S_R2}, s{S_R2}, 2', f's_add_u32 s{S_R2}, s{S_R2}, s{S_W}']
        return o + ['v_mov_b32 v60, 1', f's_and_b32 s{S_T3}, s{S_M}, 1', f's_lshl_b32 s{S_T3}, s{S_T3}, 7', f'v_mov_b32 v61, s{S_T3}',
                    f's_bfe_u32 s{S_T3}, s{S_M}, 0x10001', f's_add_u32 s{S_T3}, s{S_T3}, 10', [f's_cmp_eq_u32 s{S_W}, 0', f's_cselect_b32 s{S_T3}, s{S_T3}, 0']]

    def ssm_consts(self):
        o = []; e = lambda t: o.extend(t.split('\n'))
        G16, G512 = 32, 33
        lr, li, ld, zr, zi, a, an, cs, sn, cr, ci = 24, 25, 26, 27, 28, 29, 30, 31, 35, 62, 63
        e(f'v_lshrrev_b32 v{G512}, 4, v{L}\nv_cvt_f32_u32 v{a}, v{G512}\nv_mul_f32 v{G16}, {fh(16.0)}, v{a}\nv_mul_f32 v{G512}, {fh(512.0)}, v{a}')
        e(f'v_cmp_le_u32 {s2_(S_MK)}, 32, v{L}\nv_cmp_le_u32 {s2_(S_MK+2)}, 48, v{L}')
        for b in range(2):
            put = lambda slot, x, y: e(f'v_accvgpr_write_b32 a{A_SC+b*16+2*slot}, v{x}\nv_accvgpr_write_b32 a{A_SC+b*16+2*slot+1}, v{y}')
            e(f'v_accvgpr_read_b32 v{lr}, a{A_PR+b}\nv_accvgpr_read_b32 v{li}, a{A_PR+2+b}\nv_accvgpr_read_b32 v{ld}, a{A_PR+4+b}')
            e(f'v_lshlrev_b32 v{lr}, 16, v{lr}\nv_lshlrev_b32 v{li}, 16, v{li}\nv_lshlrev_b32 v{ld}, 16, v{ld}')
            e(f'v_mul_f32 v{ld}, {fh(LOG2E)}, v{ld}\nv_exp_f32 v{ld}, v{ld}\nv_cvt_pk_bf16_f32 v{ld}, v{ld}, v{ld}\nv_and_b32 v{ld}, 0xffff0000, v{ld}')
            e(f'v_mul_f32 v{zr}, v{ld}, v{lr}\nv_mul_f32 v{zi}, v{ld}, v{li}\nv_mul_f32 v{zr}, {fh(LOG2E)}, v{zr}\nv_mul_f32 v{zi}, {fh(1/(2*math.pi))}, v{zi}')
            def cpow(n, slot):
                n = n if isinstance(n, str) else fh(float(n))
                e(f'v_mul_f32 v{a}, {n}, v{zr}\nv_mul_f32 v{an}, {n}, v{zi}')
                e(f'v_fract_f32 v{an}, v{an}\nv_exp_f32 v{a}, v{a}\nv_cos_f32 v{cs}, v{an}\nv_sin_f32 v{sn}, v{an}')
                e(f'v_mul_f32 v{cs}, v{a}, v{cs}\nv_mul_f32 v{sn}, v{a}, v{sn}'); put(slot, cs, sn)
            cpow('1.0', 0)
            n2 = ld
            e(f'v_add_f32 v{cs}, -1.0, v{cs}\nv_mul_f32 v{n2}, v{lr}, v{lr}\nv_fmac_f32 v{n2}, v{li}, v{li}\nv_rcp_f32 v{n2}, v{n2}')
            e(f'v_mul_f32 v{cr}, v{cs}, v{lr}\nv_fmac_f32 v{cr}, v{sn}, v{li}\nv_mul_f32 v{ci}, v{sn}, v{lr}\nv_fma_f32 v{ci}, -v{cs}, v{li}, v{ci}')
            e(f'v_add_f32 v{n2}, v{n2}, v{n2}\nv_mul_f32 v{cr}, v{cr}, v{n2}\nv_mul_f32 v{ci}, v{ci}, v{n2}'); put(1, cr, ci)
            cpow(16, 2)
            e(f'v_cndmask_b32 v{cr}, 0, 1.0, {s2_(S_MK)}\nv_cndmask_b32 v{cr}, v{cr}, v{cs}, {s2_(S_MK+2)}\nv_cndmask_b32 v{ci}, 0, v{sn}, {s2_(S_MK+2)}'); put(7, cr, ci)
            for slot in (3, 4):
                e(f'v_mul_f32 v{a}, v{sn}, v{sn}\nv_mul_f32 v{sn}, v{cs}, v{sn}\nv_fma_f32 v{cs}, v{cs}, v{cs}, -v{a}\nv_add_f32 v{sn}, v{sn}, v{sn}'); put(slot, cs, sn)
            cpow(f'v{G16}', 5); cpow(f'v{G512}', 6)
        o += [f's_lshl_b32 s{S_T2}, s{S_J}, 13', f's_add_u32 s{S_T2}, s{S_T2}, {WS_AGG}', [f's_add_u32 s{SRD_T}, s{P_WS}, s{S_T2}', f's_addc_u32 s{SRD_T+1}, s{P_WS+1}, 0'], f's_mov_b32 s{SRD_T+2}, 8192',
              f's_mov_b32 s{S_MK}, 0xffff0000', f's_mov_b32 s{S_MK+1}, 0xffff0000']
        return o

    def g1(self):
        S = Stream(); cfg = self.cfg
        XK = tuple(cfg.get('xk', (3, 4, 6, 7, 9, 10, 12, 14)))
        TB = {15: cfg.get('h0', 3)}
        for s in range(16):
            slot = s & 1; last = s == 15
            for kk in range(2):
                for k in range(18):
                    ty, c, b = BLOCKS[k]; w = a4(A_RING + (k % 6)*4)
                    g0 = len(S.m)
                    for g, tb in enumerate((0, 1, 2, 3) if k % 2 == 0 else (3, 2, 1, 0)):
                        xf = a4(A_XF + (kk*4 + tb)*4)
                        if ty == 's': a = r4(acc_ssm(c, b, tb)); S.mfma(f'v_mfma_f32_16x16x32_bf16 {a}, {xf}, {w}, {a}', 1 if g == 3 else 0)
                        else: a = r4(acc_ffn(c, b, tb)); S.mfma(f'v_mfma_f32_16x16x32_bf16 {a}, {w}, {xf}, {a}', 1 if g == 3 else 0)
                        if cfg.get('w1', 1):
                            if g == 0 and k % 2 == 0: S.m[-1].also = [('a', A_RING + ((k+1) % 6)*4 + 3)] + ([('a', A_XF + (kk*4 + 3)*4)] if k == 0 else [])
                            if g == 3 and k % 2 == 0 and k != 14: S.res[-1] = 0
                    rd = []
                    if kk == 0: rd = self.frag_reads(k+5, 0, slot) if k + 5 < 18 else self.frag_reads(k+5-18, 1, slot)
                    elif k <= 12: rd = self.frag_reads(k+5, 1, slot)
                    elif not last:
                        if k == 15: rd = sum((self.frag_reads(q, 0, slot ^ 1) for q in range(3)), [])
                        elif k > 15: rd = self.frag_reads(k-13, 0, slot ^ 1)
                    for q, r in enumerate(rd): S.put(g0+q, I(r, tag=('R', s) if (kk == 1 and k <= 12) else None))
                    if kk == 0 and k in (1, 5, 9, 13): S.put(g0+2, self.x_read((k-1)//4, 1, slot))
                    if kk == 1 and k in (13, 14) and not last:
                        for q in range(2): S.put(g0+q, I(self.x_read((k-13)*2+q, 0, slot ^ 1), need=[('X', s+1)] if (k, q) == (13, 0) else None))
                    dm = None
                    if kk == 0 and s < 15:
                        k0 = cfg.get('s1k0', 8) if s == 0 else 0
                        SK = [k0 + (n*(16-k0))//8 for n in range(9)]
                        if k in SK: dm = self.dma_s(SK.index(k), s+1)
                        if s == 0 and k < 8 - cfg.get('x1pro', 8): dm = self.dma_x(cfg.get('x1pro', 8) + k, 1)
                    if kk == 1 and s < 14 and k in XK: dm = self.dma_x(XK.index(k), s+2)
                    if dm:
                        for q, x in enumerate(dm): S.put(g0 + 3 - len(dm) + q, x)
                    if kk == 1 and k == 15:
                        need = [('R', s)] + ([('S', s+1)] if not last else []) + ([('CLR', 0)] if s == 9 else [])
                        tc = [I(x) for x in self.touch(TB[s], 5 - TB[s])] if s in TB else []
                        S.pre[g0] += tc + [I('s_barrier' if not (cfg.get('x_nobar') and 4 <= s <= 8) else 's_nop 0', need=need)]
                        if s not in (6, 8): S.pre[g0] += [I(x) for g in self.stamp_items('g1') for x in g]
                        S.res[g0-1] += 1
        pos = lambda s, kk, k: s*144 + kk*72 + k*4
        warm = [(SRD_WD, n) for n in range(7)] + [(SRD_CR, 0), (SRD_CI, 0), (SRD_CR, 1), (SRD_CI, 1)]
        w0 = cfg.get('warm0', 3)
        cl = self.clears(); cst = cfg.get('cst', 5)
        S.place(cl[:6], pos(0, 1, 7), pos(1, 0, 0))
        S.place(cl[6:], pos(cst, 1, 0), pos(cst, 1, 18), dense=True)
        S.place(self.late_setup2(), pos(1, 1, 7), pos(2, 0, 0))
        for s in range(16):
            job = self.late_setup() if s == 0 else []
            if 2 <= s <= 13: job += self.cs_accum(V_PD + 4*(s & 1))
            if s in (2, 3): job += self.cs_accum((V_D4, V_T)[s-2])
            if s <= 7:
                src = V_XC if s % 2 == 0 else V_BC; t = V_U
                for k in range(4):
                    job += [f'v_lshlrev_b32 v{t}, 16, v{src+k}', f'v_and_b32 v{t+1}, 0xffff0000, v{src+k}']
                    if s % 2 == 0: job += [f'v_add_f32 v{V_SX}, v{V_SX}, v{t}', f'v_fmac_f32 v{V_SX+1}, v{t}, v{t}', f'v_add_f32 v{V_SX}, v{V_SX}, v{t+1}', f'v_fmac_f32 v{V_SX+1}, v{t+1}, v{t+1}']
                    else: job += [f'v_add_f32 v{V_SX+2}, v{V_SX+2}, v{t}', f'v_add_f32 v{V_SX+2}, v{V_SX+2}, v{t+1}']
            if cfg.get('x_nojob') and 4 <= s <= 8: job = []
            if job: S.place(job, pos(s, 0, 0), pos(s, 0, 16))
            ld = []
            if s < 2: ld += self.cs_load(V_PD + 4*s, 2*s+2) + self.cs_load((V_D4, V_T)[s], 2*s+3)
            elif s <= 11: ld += self.cs_load(V_PD + 4*(s & 1), s+4)
            if s <= 5:
                ch = (s >> 1) + 1
                if s % 2 == 0: ld.append(f'buffer_load_dwordx4 {p4(V_XC)}, v{V_SA}, {s4(SRD_X)}, s{S_XO} offen offset:{512*ch}')
                else: ld.append(f'buffer_load_dwordx4 {p4(V_BC)}, v{V_SA}, {s4(SRD_B)}, s{S_BO} offen offset:{512*ch}')
            if s == 6:
                S.place([f's_lshl_b32 s{S_T1}, s{S_R2}, 9', f's_add_u32 s{S_T1}, s{S_T1}, s{S_N2}', f's_lshl_b32 s{S_T1}, s{S_T1}, 2', f's_add_u32 s{S_T1}, s{S_T1}, s{S_KQ}', f's_lshl_b32 s{S_T1}, s{S_T1}, 6',
                         f'v_lshrrev_b32 v{V_SA}, 3, v{L}', f'v_lshlrev_b32 v{V_SA}, 8, v{V_SA}', f'v_and_or_b32 v{V_SA}, v{L}, 7, v{V_SA}', f'v_lshl_add_u32 v{V_SA}, v{V_SA}, 3, s{S_T1}'], pos(6, 0, 0), pos(6, 0, 16))
            if 6 <= s <= 13:
                ld += [f's_mov_b32 s{S_T0}, {(s-6)*8*2048}', f'buffer_load_dwordx2 a[{A_XR+2*(s-6)}:{A_XR+2*(s-6)+1}], v{V_SA}, {s4(SRD_X)}, s{S_T0} offen']
            if w0 <= s < w0 + 11:
                sr, n = warm[s - w0]
                ld += [f's_lshl_b32 s{S_U1}, s{S_GW}, 10', f's_add_u32 s{S_U1}, s{S_U1}, {n << 20}', f'buffer_load_dwordx4 {p4(V_D4)}, v{V_L16}, {s4(sr)}, s{S_U1} offen ; nodef']
            if s in (10, 11):
                ld += [[f's_cmp_eq_u32 s{S_T3}, {s}', f's_cselect_b32 s{S_T2}, 0, 0x1000'], ['s_mov_b64 exec, 1', f'buffer_atomic_add v60, v61, {s4(SRD_T)}, s{S_T2} offen sc1', 's_mov_b64 exec, -1']]
            if s in (3, 8, 12, 13, 14): ld += self.code_pf({3: 16384, 8: 32768, 12: 65536, 13: 49152+4096, 14: 32768+4096}[s], S_CNT)
            if cfg.get('x_nold') and 4 <= s <= 8: ld = [x for x in ld if not any(t in str(x) for t in cfg['x_nold'])]
            if ld: S.place(ld, pos(s, 0, 16) + 3, pos(s, 1, 7), dense=True)
        T = V_T; job = []
        for v in (V_SX, V_SX+1, V_SX+2):
            for sh in (8, 4, 2, 1): job.append(f'v_add_f32_dpp v{v}, v{v}, v{v} row_ror:{sh} row_mask:0xf bank_mask:0xf')
            job += [f'v_mov_b32 v{T}, v{v}', f'v_permlane16_swap_b32 v{v}, v{T}', f'v_add_f32 v{v}, v{v}, v{T}']
        bfr = lambda v: [f'v_cvt_pk_bf16_f32 v{v}, v{v}, v{v}', f'v_and_b32 v{v}, 0xffff0000, v{v}']
        job += [f'v_mul_f32 v{V_SX}, {fh(-1/1024)}, v{V_SX}', f'v_mul_f32 v{V_SX+1}, {fh(1/1024)}, v{V_SX+1}',
                f'v_fma_f32 v{V_SX+1}, -v{V_SX}, v{V_SX}, v{V_SX+1}', f'v_max_f32 v{V_SX+1}, 0, v{V_SX+1}'] + bfr(V_SX+1)
        job += [f'v_add_f32 v{V_SX+1}, {fh(1e-5)}, v{V_SX+1}'] + bfr(V_SX+1) + [f'v_sqrt_f32 v{V_SX+1}, v{V_SX+1}'] + bfr(V_SX+1) + bfr(V_SX)
        job += [f'v_lshrrev_b32 v{T+1}, 5, v{L}', f'v_lshlrev_b32 v{T+2}, 3, v{T+1}', f'v_lshlrev_b32 v{T+3}, 2, v{T+1}', f's_mov_b32 s{P_WU}, 1', f's_mov_b32 s{P_WU+1}, 1',
                f's_lshr_b32 s{S_U0}, s{S_XO}, 8', f's_add_u32 s{S_U0}, s{S_U0}, {WS_STATS}',
                [f's_mov_b64 exec, {s2_(P_WU)}', I(f'buffer_store_dwordx2 {p2(V_SX)}, v{T+2}, {WSR}, s{S_U0} offen sc1', tag=('CLR', 0)), 's_mov_b64 exec, -1'],
                f's_lshr_b32 s{S_U0}, s{S_BO}, 9', f's_and_b32 s{S_T1}, s{S_W}, 1', f's_lshl_b32 s{S_T1}, s{S_T1}, 12', f's_add_u32 s{S_U0}, s{S_U0}, s{S_T1}', f's_add_u32 s{S_U0}, s{S_U0}, {WS_BS}',
                [f's_mov_b64 exec, {s2_(P_WU)}', I(f'buffer_store_dword v{V_SX+2}, v{T+3}, {WSR}, s{S_U0} offen sc1', tag=('CLR', 0)), 's_mov_b64 exec, -1']]
        S.place(job[:-9], pos(7, 1, 6), pos(8, 0, 16))
        S.place(job[-9:], pos(8, 0, 17), pos(8, 1, 13), dense=True)
        ldc = f'global_load_dword v{T+1}, v{T}, {s2_(P_DBG)} sc1'
        S.place([f'v_lshrrev_b32 v{T}, 5, v{L}', f'v_lshlrev_b32 v{T}, 7, v{T}', ldc], pos(13, 0, 17), pos(13, 1, 8), dense=True)
        S.place(self.guard(ldc, f'v_cmp_gt_u32 vcc, 128, v{T+1}'), pos(14, 0, 4), pos(14, 0, 8))
        job = [f's_and_b32 s{S_U0}, s{S_W}, 1', f's_lshl_b32 s{S_U0}, s{S_U0}, 12', f's_lshr_b32 s{S_T1}, s{S_W}, 1', f's_lshl_b32 s{S_T1}, s{S_T1}, 11',
               f's_add_u32 s{S_U0}, s{S_U0}, s{S_T1}', f's_add_u32 s{S_U0}, s{S_U0}, {L_CSP}', f'v_lshl_add_u32 v{T+2}, v{L}, 5, s{S_U0}',
               f'ds_write_b128 v{T+2}, {p4(V_CS)}', I(f'ds_write_b128 v{T+2}, {p4(V_CS+4)} offset:16', tag=('R', 13))]
        S.place(job, pos(13, 0, 16), pos(13, 1, 8))
        S.place(self.ssm_consts(), pos(8, 1, 13), pos(13, 1, 14))
        G = 36
        job = [f'v_lshrrev_b32 v{G+8}, 7, v0', f'v_lshlrev_b32 v{G+8}, 12, v{G+8}', f'v_and_b32 v{G+9}, 127, v0', f'v_lshl_add_u32 v{G+8}, v{G+9}, 2, v{G+8}', f'v_add_u32 v{G+8}, {L_CSP}, v{G+8}']
        job += [f'ds_read_b32 v{24+k}, v{G+8} offset:{(k>>2)*2048 + (k&3)*448}' for k in range(8)]
        job += [f's_lshl_b32 s{S_T2}, s{S_J}, 13', f's_add_u32 s{S_T2}, s{S_T2}, {WS_CS}', f's_lshl_b32 s{S_T1}, s{S_M}, 10', f's_add_u32 s{S_T1}, s{S_T1}, s{S_T2}', f's_add_u32 s{S_T3}, s{S_T2}, 4096', f'v_lshlrev_b32 v{G+8}, 2, v0']
        job += [f'v_add_f32 v24, v24, v{24+k}' for k in range(1, 8)]
        job += [f'v_min_u32 v24, -2, v24', f'buffer_store_dword v24, v{G+8}, {WSR}, s{S_T1} offen sc1']
        S.place(job, pos(13, 1, 15), pos(14, 0, 8), dense=True)
        TT = 52
        lds_ = f'buffer_load_dwordx4 {p4(TT)}, v60, {WSR}, s{S_XO} offen sc1\nbuffer_load_dwordx4 {p4(TT+4)}, v60, {WSR}, s{S_XO} offen offset:16 sc1'
        S.place([f'v_and_b32 v60, 15, v{L}', 'v_lshlrev_b32 v60, 5, v60', f's_lshl_b32 s{S_XO}, s{S_R}, 9', f's_add_u32 s{S_XO}, s{S_XO}, {WS_STATS}', lds_], pos(14, 0, 8), pos(14, 0, 16))
        job = []
        C = 20
        for tb in range(4):
            nm, sd = TT+2*tb, TT+2*tb+1
            job += [f'v_mov_b32 v{C+4*tb}, v{nm}', f'v_mul_f32 v{C+4*tb+1}, v{sd}, v{sd}', f'v_rcp_f32 v{sd}, v{sd}', f'v_mul_f32 v{C+4*tb+2}, {fh(K0)}, v{sd}',
                    f'v_mul_f32 v61, v{sd}, v{sd}', f'v_mul_f32 v61, v61, v{sd}', f'v_mul_f32 v{C+4*tb+3}, {fh(K1)}, v61']
        job += [f's_lshl_b32 s{S_XO}, s{S_W}, 9', f's_add_u32 s{S_XO}, s{S_XO}, {L_ST}', f'v_add_u32 v60, s{S_XO}, v60', f'ds_write_b128 v60, {p4(TT)}', f'ds_write_b128 v60, {p4(TT+4)} offset:16']
        S.place(job, pos(15, 0, 0), pos(15, 0, 12))
        ldg = '\n'.join(f'buffer_load_dword v{G+k}, v{G+8}, {WSR}, s{S_T2 if k < 4 else S_T3} offen offset:{(k&3)*1024} sc1' for k in range(8))
        S.place([ldg], pos(15, 0, 0), pos(15, 0, 11), dense=True)
        job = self.guard(ldg, self.maxchk(G+9, G, 8)) + [f'v_add_f32 v{G}, v{G}, v{G+k}' for k in range(1, 8)]
        job += [f'v_add_u32 v{G+8}, {L_CSUM}, v{G+8}', I(f'ds_write_b32 v{G+8}, v{G}', tag=('R', 15))]
        S.place(job, pos(15, 1, 7), pos(15, 1, 13))
        S.place(self.g2_setup(), pos(14, 0, 17), pos(15, 0, 0))
        S.place(self.ffn_setup(), pos(15, 0, 12), pos(15, 1, 7))
        S.place(self.rec(lambda: self.csread(0)), pos(15, 1, 15), pos(15, 1, 16))
        S.place([x for S_ in range(3) for n in range(4) for x in self.w_dma(S_, n)], pos(15, 0, 10), pos(15, 1, 15))
        S.place(self.ssm_loads(), pos(14, 1, 7), pos(14, 1, 17))
        S.emit(self.P)

    def rec(self, fn):
        P = self.P; old = P.cur; P.cur = []
        fn(); out = P.cur; P.cur = old; return out
    def weave(self, base, extra, lo=0.0, hi=1.0):
        n = len(base); at = {}
        for k, g in enumerate(extra or []): at.setdefault(int(n*(lo + (hi-lo)*(k + 0.5)/len(extra))), []).append(g)
        pend = []; masked = False
        for k, it in enumerate(base):
            pend += at.get(k, [])
            if pend and not masked and not it.op.startswith(('s_addc', 's_subb', 's_cselect', 's_cbranch_scc')):
                self.flat(pend); pend = []
            self.P.add([it])
            if ('exec', 0) in it.defs: masked = it.t != 's_mov_b64 exec, -1'
        self.flat(pend)
    def ffn_setup(self):
        o = [f'v_lshrrev_b32 v60, 4, v{L}', 'v_lshlrev_b32 v60, 4, v60', f'v_add_u32 v60, {L_CSUM}, v60', f'v_lshlrev_b32 v61, 4, v{L}',
             f'v_lshrrev_b32 v62, 5, v{L}', 'v_lshl_add_u32 v62, v62, 9, v61',
             f's_lshr_b32 s{S_T1}, s{S_J}, 3', f's_lshl_b32 s{S_U0}, s{S_R}, 2', f's_add_u32 s{S_T1}, s{S_T1}, s{S_U0}', f's_mul_i32 s{S_BO}, s{S_T1}, {44*4096}']
        if WS_A2: o.append(f's_add_u32 s{S_BO}, s{S_BO}, {WS_A2}')
        o += [f's_and_b32 s{S_T1}, s{S_J}, 7', f's_lshl_b32 s{S_T1}, s{S_T1}, 12', f's_add_u32 s{S_U0}, s{S_BO}, s{S_T1}',
              f's_bfe_u32 s{S_T1}, s{S_J}, 0x20001', f's_lshl_b32 s{S_T1}, s{S_T1}, 12', f's_add_u32 s{S_U1}, s{S_BO}, s{S_T1}',
              f's_and_b32 s{S_T1}, s{S_J}, 1', f's_lshl_b32 s{S_T1}, s{S_T1}, 9', f's_add_u32 s{S_U1}, s{S_U1}, s{S_T1}', f's_add_u32 s{S_U1}, s{S_U1}, {24*4096}']
        return o
    def csread(self, b):
        o = 36 + (b & 1)*8
        self.e(f'ds_read_b128 {p4(o)}, v60 offset:{b*64}\nds_read_b128 {p4(o+4)}, v60 offset:{512+b*64}')
    def ffn_block(self, b):
        e = self.e; C, CS, TT = 20, 36, 52
        if b < 6: self.csread(b+1)
        if b == 6:
            for mat in range(2):
                for tb in range(4):
                    for r in range(4): e(f'v_accvgpr_read_b32 v{acc_ffn(mat, 5, tb)[1]+r}, a{acc_ffn(mat, 6, tb)[1]+r}')
        cg = CS + (b & 1)*8; cu = cg + 4; bb_ = min(b, 5)
        for tp in range(2):
            U = []
            for tb in (2*tp, 2*tp+1):
                if b < 4: O = acc_ffn(1, b & ~1, tb)[1] + 2*(b & 1)
                elif b < 6: O = V_LATE + 4*tb + 2*(b & 1)
                else: O = V_LATE + 16 + 4*tp + 2*(tb & 1)
                for h in range(2): U.append((acc_ffn(0, bb_, tb)[1]+2*h, acc_ffn(1, bb_, tb)[1]+2*h, cg+2*h, cu+2*h, C+4*tb, TT+2*len(U), O+h))
            for (g, u, a, bb, c, t, o) in U: e(f'v_pk_fma_f32 {p2(g)}, {p2(a)}, {p2(c)}, {p2(g)} op_sel_hi:[1,0,1]')
            for (g, u, a, bb, c, t, o) in U: e(f'v_pk_mul_f32 {p2(t)}, {p2(g)}, {p2(g)}')
            for (g, u, a, bb, c, t, o) in U: e(f'v_pk_fma_f32 {p2(t)}, {p2(t)}, {p2(c+2)}, {p2(c+2)} op_sel:[0,1,0] op_sel_hi:[1,1,0]')
            for (g, u, a, bb, c, t, o) in U: e(f'v_pk_mul_f32 {p2(t)}, {p2(g)}, {p2(t)}')
            for (g, u, a, bb, c, t, o) in U: e(f'v_exp_f32 v{t}, v{t}\nv_exp_f32 v{t+1}, v{t+1}')
            for (g, u, a, bb, c, t, o) in U: e(f'v_pk_fma_f32 {p2(u)}, {p2(bb)}, {p2(c)}, {p2(u)} op_sel_hi:[1,0,1]')
            for (g, u, a, bb, c, t, o) in U: e(f'v_pk_fma_f32 {p2(t)}, {p2(t)}, {p2(c)}, {p2(c)} op_sel:[0,1,1] op_sel_hi:[1,1,1]')
            for (g, u, a, bb, c, t, o) in U: e(f'v_rcp_f32 v{t}, v{t}\nv_rcp_f32 v{t+1}, v{t+1}')
            for (g, u, a, bb, c, t, o) in U: e(f'v_pk_mul_f32 {p2(g)}, {p2(g)}, {p2(u)}')
            for (g, u, a, bb, c, t, o) in U: e(f'v_pk_mul_f32 {p2(g)}, {p2(g)}, {p2(t)}')
            for (g, u, a, bb, c, t, o) in U: e(f'v_cvt_pk_bf16_f32 v{o}, v{g}, v{g+1}')
            if b & 1:
                for tb in (2*tp, 2*tp+1):
                    O = acc_ffn(1, b & ~1, tb)[1] if b < 4 else V_LATE + 4*tb
                    g = [I(f'buffer_store_dwordx4 {p4(O)}, v61, {WSR}, s{S_U0} offen offset:{tb*1024} sc1', tag=('L1' if b < 4 else 'L2', 0))]
                    if tb == 3 and b < 4: g.append(f's_add_u32 s{S_U0}, s{S_U0}, {8*4096}')
                    self.late.append(g)
            if b == 6:
                O = V_LATE + 16 + 4*tp
                e(f'v_permlane32_swap_b32 v{O}, v{O+2}\nv_permlane32_swap_b32 v{O+1}, v{O+3}')
                self.late.append(I(f'buffer_store_dwordx4 {p4(O)}, v62, {WSR}, s{S_U1} offen offset:{2*tp*1024} sc1', tag=('L2', 0)))
    def flag(self, line, tag):
        return [f's_add_u32 s{S_FL+1}, s{S_FL}, {line << 17}', [I('s_mov_b64 exec, 1', need=[tag]), f'buffer_store_dword v{L}, v{L}, {WSR}, s{S_FL+1} offen sc1', 's_mov_b64 exec, -1']]
    def poll(self, line, vd): return f's_mov_b32 s{S_LB}, {line << 17}\nbuffer_load_dword v{vd}, v{V_PF}, {WSR}, s{S_LB} offen sc1'

    H, ST, AG = 64, 160, 192
    BSR = (4, 18)
    def h(self, b, st): return self.H + (b*16 + st)*2
    def kread(self, base, slots):
        self.kmap = {(b, sl): base + (q*2 + b)*2 for q, sl in enumerate(slots) for b in range(2)}
        for (b, sl), r in self.kmap.items():
            for c in range(2): self.e(f'v_accvgpr_read_b32 v{r+c}, a{A_SC+b*16+2*sl+c}')
    def kc(self, b, slot): return self.kmap[(b, slot)]
    @staticmethod
    def cfma(d, x, lam, add):
        return [f'v_pk_fma_f32 {p2(d)}, {p2(x)}, {p2(lam)}, {p2(add)} op_sel_hi:[1,0,1]',
                f'v_pk_fma_f32 {p2(d)}, {p2(x)}, {p2(lam)}, {p2(d)} op_sel:[1,1,0] op_sel_hi:[0,1,1] neg_lo:[0,1,0]']
    @staticmethod
    def cmul(d, x, lam):
        return [f'v_pk_mul_f32 {p2(d)}, {p2(x)}, {p2(lam)} op_sel_hi:[1,0]',
                f'v_pk_fma_f32 {p2(d)}, {p2(x)}, {p2(lam)}, {p2(d)} op_sel:[1,1,0] op_sel_hi:[0,1,1] neg_lo:[0,1,0]']
    def both(self, f):
        for x, y in zip(f(0), f(1)): self.e(x); self.e(y)
    def ssm_loads(self):
        o = [f'v_and_b32 v12, 15, v{L}', 'v_lshlrev_b32 v12, 2, v12', f's_lshl_b32 s{S_LW}, s{S_J}, 7', f's_add_u32 s{S_LW}, s{S_LW}, {WS_BS}', f's_add_u32 s{S_LB}, s{S_LW}, 4096']
        self.ldbs = '\n'.join(f'buffer_load_dword v{self.BSR[b]+c}, v12, {WSR}, s{(S_LW, S_LB)[c]} offen offset:{64*b} sc1' for b in range(2) for c in range(2))
        return o + self.ldbs.split('\n')
    def ssm_part1(self):
        e = self.e; ST, BS, h, kc = self.ST, self.BSR, self.h, self.kc
        e(f'v_lshrrev_b32 v14, 4, v{L}\nv_lshl_add_u32 v13, v14, 7, s{S_XO}')
        for k in range(8): e(f'ds_read_b128 {p4(ST+4*k)}, v13 offset:{16*k}')
        for b in range(2):
            for r in range(4):
                for tb in range(4):
                    for c in range(2): e(f'v_accvgpr_read_b32 v{h(b, 4*r+tb)+c}, a{acc_ssm(c, b, tb)[1]+r}')
        self.kread(128, (0, 2, 3, 7))
        for st in range(16):
            for b in range(2): e(f'v_pk_fma_f32 {p2(h(b,st))}, {p2(BS[b])}, {p2(ST+2*st)}, {p2(h(b,st))} op_sel_hi:[1,0,1]')
        for st in range(16):
            for b in range(2): e(f'v_pk_mul_f32 {p2(h(b,st))}, {p2(h(b,st))}, {p2(ST+2*st)} op_sel:[0,1] op_sel_hi:[1,1]')
        E, X, Y = ST, ST+4, ST+8
        for st in range(1, 16):
            self.both(lambda b: self.cfma(E+4*(st&1)+2*b, h(b, 0) if st == 1 else E+4*((st-1)&1)+2*b, kc(b, 0), h(b, st)))
        e(f'v_pk_mov_b32 {p2(E)}, {p2(X)}, {p2(X)} op_sel:[0,1]\nv_pk_mov_b32 {p2(E+2)}, {p2(X+2)}, {p2(X+2)} op_sel:[0,1]')
        e(f'v_lshlrev_b32 v12, 2, v12\ns_sub_u32 s{S_LW}, 31, s{S_R}')
        for k in range(4): e(f'v_permlane16_swap_b32 v{X+k}, v{E+k}')
        self.both(lambda b: self.cfma(E+2*b, X+2*b, kc(b, 2), E+2*b))
        e(f'v_pk_mov_b32 {p2(Y)}, {p2(E)}, {p2(E)} op_sel:[0,1]\nv_pk_mov_b32 {p2(Y+2)}, {p2(E+2)}, {p2(E+2)} op_sel:[0,1]')
        e(f'v_lshl_add_u32 v13, v14, 11, v12\ns_lshl_b32 s{S_LW}, s{S_LW}, 8')
        for k in range(4): e(f'v_permlane32_swap_b32 v{E+k}, v{Y+k}')
        self.both(lambda b: self.cfma(Y+2*b, E+2*b, kc(b, 3), Y+2*b))
        for k in range(4): e(f'v_min_u32 v{Y+k}, -2, v{Y+k}')
        e(f's_mov_b64 exec, 0xffff\nbuffer_store_dwordx4 {p4(Y)}, v12, {s4(SRD_T)}, s{S_LW} offen sc1\ns_mov_b64 exec, -1')
        for k in range(4): e(f'v_cndmask_b32 v{X+k}, 0, v{X+k}, {s2_(S_MK)}')
        self.both(lambda b: self.cfma(X+2*b, E+2*b, kc(b, 7), X+2*b))
        self.ldag = '\n'.join(f'buffer_load_dwordx4 {p4(self.AG+4*k)}, v13, {s4(SRD_T)}, s{S_LW} offen offset:{256*(k+1)} sc1' for k in range(8))
    def ssm_part2a(self):
        e = self.e; ST, h, kc, AG = self.ST, self.h, self.kc, self.AG
        E, X, Y = ST, ST+4, ST+8
        self.kread(20, (1, 0, 4, 5, 6))
        self.flat(self.guard(self.ldag, self.maxchk(Y, AG, 32)))
        for k in range(6, -1, -1): self.both(lambda b: self.cfma(AG+4*k+2*b, AG+4*(k+1)+2*b, kc(b, 4), AG+4*k+2*b))
        self.both(lambda b: self.cmul(Y+2*b, AG+2*b, kc(b, 6)))
        for sw in ('v_permlane32_swap_b32', 'v_permlane16_swap_b32'):
            e(f'v_pk_mov_b32 {p2(E)}, {p2(Y)}, {p2(Y)} op_sel:[0,1]\nv_pk_mov_b32 {p2(E+2)}, {p2(Y+2)}, {p2(Y+2)} op_sel:[0,1]')
            for k in range(4): e(f'{sw} v{Y+k}, v{E+k}')
            e(f'v_pk_add_f32 {p2(Y)}, {p2(Y)}, {p2(E)}\nv_pk_add_f32 {p2(Y+2)}, {p2(Y+2)}, {p2(E+2)}')
        self.both(lambda b: self.cfma(X+2*b, Y+2*b, kc(b, 5), X+2*b))
    def ssm_part2b(self):
        h, kc, X = self.h, self.kc, self.ST + 4
        for st in range(16): self.both(lambda b: self.cfma(h(b, st), X+2*b if st == 0 else h(b, st-1), kc(b, 0), h(b, st)))
    def ssm_part2c(self):
        h, kc = self.h, self.kc; AD, O, PK, RB = 46, 38, 28, 36
        o = [f's_lshl_b32 s{S_T1}, s{S_W}, 11', f's_add_u32 s{S_T1}, s{S_T1}, {L_HT}',
             f'v_lshrrev_b32 v{AD}, 1, v{L}', f'v_xor_b32 v{AD}, v{AD}, v{L}', f'v_and_b32 v{AD}, 4, v{AD}', f'v_mul_u32_u24 v{AD}, 3, v{AD}', f'v_xor_b32 v{AD}, v{AD}, v{L}', f'v_and_b32 v{AD}, 15, v{AD}',
             f'v_lshrrev_b32 v{AD+1}, 2, v{AD}', f'v_lshrrev_b32 v{RB}, 4, v{L}', f'v_xor_b32 v{AD+1}, v{AD+1}, v{RB}',
             f'v_lshlrev_b32 v{AD}, 5, v{AD}', f'v_lshl_add_u32 v{AD}, v{AD+1}, 3, v{AD}', f'v_add_u32 v{AD}, s{S_T1}, v{AD}',
             f'v_and_b32 v{RB}, 1, v{RB}', f'v_xor_b32 v{RB}, v{RB}, v{L}',
             f'v_lshrrev_b32 v{AD+1}, 5, v{L}', f'v_lshlrev_b32 v{AD+1}, 8, v{AD+1}', f'v_lshl_add_u32 v{AD+1}, v{RB}, 3, v{AD+1}', f'v_add_u32 v{AD+1}, s{S_T1}, v{AD+1}', f'v_xor_b32 v{RB}, 16, v{AD+1}',
             f's_bfe_u32 s{S_T1}, s{S_J}, 0x20001', f's_lshl_b32 s{S_T1}, s{S_T1}, 2', f's_and_b32 s{S_T2}, s{S_J}, 1', f's_add_u32 s{S_T1}, s{S_T1}, s{S_T2}', f's_add_u32 s{S_T1}, s{S_T1}, 28',
             f's_lshl_b32 s{S_T1}, s{S_T1}, 12', f's_add_u32 s{S_T2}, s{S_T1}, s{S_BO}', f's_add_u32 s{S_T3}, s{S_T2}, 8192']
        pend = []
        for tb in range(4):
            for b in range(2):
                cr, ci = kc(b, 1), kc(b, 1) + 1; P_ = PK + 4*b
                for r in range(4):
                    x = h(b, 4*r+tb)
                    o += [f'v_mul_f32 v{O+r}, v{x}, v{cr}', f'v_mul_f32 v{O+4+r}, v{x}, v{ci}', f'v_fma_f32 v{O+r}, -v{x+1}, v{ci}, v{O+r}', f'v_fmac_f32 v{O+4+r}, v{x+1}, v{cr}']
                    if r == 2 and pend: o.append(pend.pop(0))
                o += [f'v_cvt_pk_bf16_f32 v{P_}, v{O}, v{O+1}', f'v_cvt_pk_bf16_f32 v{P_+1}, v{O+2}, v{O+3}', f'v_cvt_pk_bf16_f32 v{P_+2}, -v{O+4}, -v{O+5}', f'v_cvt_pk_bf16_f32 v{P_+3}, -v{O+6}, -v{O+7}']
                o += [f'ds_write_b64 v{AD}, {p2(P_+2*c)} offset:{c*1024 + b*512}' for c in range(2)]
            for c in range(2):
                r = (tb*2 + c)*4
                o += [f'ds_read_b64_tr_b16 a[{r+2*hh}:{r+2*hh+1}], v{(AD+1, RB)[hh]} offset:{c*1024 + hh*256}' for hh in range(2)]
                pend.append(I(f'buffer_store_dwordx4 {a4(r)}, v61, {WSR}, s{(S_T2, S_T3)[c]} offen offset:{tb*1024} sc1', tag=('L3', 0)))
        return o, pend

    def g2_setup(self):
        T = 46
        return [                f'v_lshlrev_b32 v{V2_A}, 4, v{L}'] + \
               [f's_lshl_b32 s{S_KA}, s{S_R2}, 2', f's_add_u32 s{S_KA}, s{S_KA}, s{S_KQ}', f's_mul_i32 s{S_KA}, s{S_KA}, {44*4096}'] + \
               ([f's_add_u32 s{S_KA}, s{S_KA}, {WS_A2}'] if WS_A2 else []) + \
               [f'v_lshrrev_b32 v{T}, 4, v{L}', f'v_lshlrev_b32 v{T+1}, 1, v{T}', f'v_and_b32 v{T+2}, 15, v{L}', f'v_xor_b32 v{T+1}, v{T+1}, v{T+2}', f'v_lshlrev_b32 v{T+1}, 4, v{T+1}',
                f's_and_b32 s{S_T1}, s{S_W}, 1', f's_lshl_b32 s{S_T1}, s{S_T1}, 7', f's_add_u32 s{S_T1}, s{S_T1}, s{S_N2}', f's_lshl_b32 s{S_T1}, s{S_T1}, 8',
                f'v_lshl_add_u32 v{V2_D}, v{T}, 11, v{T+1}', f'v_add_u32 v{V2_D}, s{S_T1}, v{V2_D}', f's_lshl_b32 s{S_T1}, s{S_KQ}, 6', f'v_xor_b32 v{V2_D}, s{S_T1}, v{V2_D}', f'v_xor_b32 v{V2_D+1}, 128, v{V2_D}', f'v_add_u32 v{V2_D+1}, {4*2048}, v{V2_D+1}',
                f's_mul_i32 s{S_DA}, s{S_KQ}, {896*2048}', f's_lshr_b32 s{S_T1}, s{S_W}, 1', f's_mul_i32 s{S_DD}, s{S_T1}, {224*2048}', f's_add_u32 s{S_DD}, s{S_DD}, s{S_DA}',
                f's_lshl_b32 s{S_T1}, s{S_T1}, 18', f's_add_u32 s{S_DA}, s{S_DA}, s{S_T1}',
                f'v_and_b32 v{T+1}, 7, v{L}', f'v_xor_b32 v{T+1}, v{T+1}, v{T}', f'v_lshlrev_b32 v{T+1}, 4, v{T+1}', f'v_lshrrev_b32 v{T+3}, 3, v{L}',
                f's_lshl_b32 s{S_T1}, s{S_N2}, 18',
                f'v_lshl_add_u32 v{V2_C}, v{T+3}, 11, v{T+1}', f'v_add_u32 v{V2_C}, s{S_T1}, v{V2_C}', f'v_xor_b32 v{V2_C+1}, 64, v{V2_C}', f'v_add_u32 v{V2_C+1}, {8*2048}, v{V2_C+1}',
                f's_xor_b32 s{S_DC}, s{S_KQ}, s{S_W}', f's_lshl_b32 s{S_DC}, s{S_DC}, 7', f's_add_u32 s{S_DC}, s{S_DC}, s{S_KQ}', f's_lshl_b32 s{S_DC}, s{S_DC}, 9', f's_lshl_b32 s{S_LD}, s{S_W}, 12',
                f'v_subrev_u32 v{V2_RC}, {LDS_B}, v{V_BR}', f'v_xor_b32 v{V2_RC+1}, 64, v{V2_RC}',
                f's_and_b32 s{S_T1}, s{S_R2}, 28', f's_add_u32 s{S_T1}, s{S_T1}, s{S_KQ}', f's_lshl_b32 s{S_T1}, s{S_T1}, 3', f's_add_u32 s{S_T1}, s{S_T1}, s{S_W}',
                f's_lshl_b32 s{S_T1}, s{S_T1}, 7', f's_add_u32 s{S_T1}, s{S_T1}, {WS_FLAG}',
                f'v_bfe_u32 v{T}, v{L}, 3, 2', f'v_lshrrev_b32 v{T+1}, 5, v{L}', f'v_lshlrev_b32 v{T+1}, 9, v{T+1}', f'v_lshl_add_u32 v{T}, v{T}, 15, v{T+1}', f'v_add_u32 v{V_PF}, s{S_T1}, v{T}']
    def g2_rd_setup(self):
        T = V2_RD + 1
        return [f'v_lshrrev_b32 v{T}, 2, v{L}', f'v_and_b32 v{T+1}, 7, v{T}', f'v_lshlrev_b32 v{T+1}, 5, v{T+1}', f'v_lshl_add_u32 v{T}, v{T}, 8, v{T+1}',
                f'v_and_b32 v{T+1}, 3, v{L}', f'v_lshl_add_u32 v{V2_RD}, v{T+1}, 3, v{T}'] + [f'v_xor_b32 v{V2_RD+nb}, {nb*32}, v{V2_RD}' for nb in range(1, 8)]
    PASS = (1, 2, 3, 0)
    def g2_blocks(self):
        ring = lambda s: A2_ACT + (s % 4)*16
        norm = lambda s, k: (s >> 1, 'f' if s < 28 else 'c', s & 1, k, ring(s), k)
        nd = self.cfg.get('nd', 4)
        B = [norm(s, k) for s in range(36) for k in range(8) if k >= 2 or s < 36 - nd]
        self.PB = []
        for q, o in enumerate(self.PASS):
            self.PB.append(len(B))
            if o == 0: B += [norm(s, k) for s in range(36 - nd, 36) for k in range(2)]
            B += [(18 + q, 'c', t & 1, 2*(t >> 1) + hb, tact(36 + t, 0), 2*o + hb) for t in range(8) for hb in range(2)]
        return B
    def w_reads(self, i):
        S, kind, kk, k = self.B[i][:4]
        r = A2_W + (i % 8)*4; off = SLOT[S % NS] & 0xffff
        RD, RC = ((V2_RD, V2_RC), (V2_RDH, V2_RCH))[SLOT[S % NS] >> 16]
        if kind == 'f': return [f'ds_read_b64_tr_b16 a[{r}:{r+1}], v{RD+k} offset:{off + kk*8192}', f'ds_read_b64_tr_b16 a[{r+2}:{r+3}], v{RD+k} offset:{off + kk*8192 + 4096}']
        return [f'ds_read_b128 {a4(r)}, v{RC+kk} offset:{off + k*2048}']
    def w_dma(self, S, n):
        o = [f's_add_u32 m0, s{S_LD}, {SLOT[S % NS] + n*1024}']; op = 's_add_u32'
        if S < 12: base, c, sr, va = S_DA, (224*(S & 3) + 32*(S >> 2) + 8*(n >> 1))*2048, SRD_WD, V2_D
        elif S < 14: base, c, sr, va = S_DD, (96 + 448*(S - 12) + 8*(n >> 1))*2048, SRD_WD, V2_D
        elif S < 18: base, c, sr, va = S_DC, ((S - 14) >> 1)*128 + 16*(n >> 1)*2048, (SRD_CR, SRD_CI)[S & 1], V2_C
        else: base, c, sr, va, op = S_DA, (self.PASS[S-18]*32 + 16*(n >> 1))*2048, SRD_W, V2_C, 's_xor_b32'
        if n % 2 == 0: o.append(f'{op} s{S_T0}, s{base}, {c}')
        return tagged(o + [f'buffer_load_dwordx4 v{va+(n&1)}, {s4(sr)}, s{S_T0} offen lds'], ('W', S))
    def a_load(self, s, p):
        if s >= 36:
            o = [f's_add_u32 s{S_LX}, s{S_LX}, 4096'] if p == 0 else []
            return o + [f'buffer_load_dwordx4 {a4(tact(s, p))}, v{V2_A}, {WSR}, s{S_LX} offen offset:{p*1024} sc1']
        o = [f'buffer_load_dwordx4 {a4(A2_ACT + ((s % 4)*4 + p)*4)}, v{V2_A}, {WSR}, s{S_KA} offen offset:{p*1024} sc1']
        if p == 3: o.append(f's_add_u32 s{S_KA}, s{S_KA}, 4096')
        return o
    def send(self, q):
        o = self.PASS[q]
        it = [f's_xor_b32 s{S_T1}, s{S_GW}, {o << 3}', f's_mul_i32 s{S_T1}, s{S_T1}, {3*4096}', f's_add_u32 s{S_T1}, s{S_T1}, {WS_XCH + (o-1)*4096}']
        for tb in range(4):
            a, b = acc2(tb, 2*o), acc2(tb, 2*o+1)
            it += [f'v_cvt_pk_bf16_f32 v{a}, v{a}, v{a+1}', f'v_cvt_pk_bf16_f32 v{a+1}, v{a+2}, v{a+3}', f'v_cvt_pk_bf16_f32 v{a+2}, v{b}, v{b+1}', f'v_cvt_pk_bf16_f32 v{a+3}, v{b+2}, v{b+3}',
                   I(f'buffer_store_dwordx4 {p4(a)}, v{V2_A}, {WSR}, s{S_T1} offen offset:{tb*1024} {self.cfg.get("xsp", "sc1")}', tag=('XS', o))]
        return it
    def xflag(self, o): return self.flag(4 + o, ('XS', o))
    def recv(self, o, cond=False):
        pre = [f's_add_u32 s{S_T2}, s{S_U0}, {(o-1)*4096}']
        if cond: pre.append([f's_bitcmp1_b64 {s2_(S_MK)}, {16*o}', f's_cselect_b32 s{S_T2}, {OOB}, s{S_T2}'])
        return pre + [f'buffer_load_dwordx4 {p4(acc2(tb, 2*o+1))}, v{V2_A}, {WSR}, s{S_T2} offen offset:{tb*1024} sc1' for tb in range(4)]
    def g2(self):
        S = Stream(); cfg = self.cfg; B = self.B; PB = self.PB
        npre = cfg.get('npre', 8); lead = cfg.get('wlead', 9)
        pos = lambda s, k=0: s*32 + k*4
        opened = {0}; bar = {}
        for i, (S_, kind, kk, k, x, nb) in enumerate(B):
            g0 = len(S.m); w = a4(A2_W + (i % 8)*4)
            for g, p in enumerate((0, 1, 2, 3) if i % 2 == 0 else (3, 2, 1, 0)):
                a = acc2(p, nb)
                S.mfma(f'v_mfma_f32_16x16x32_bf16 {p4(a)}, {w}, {a4(x + 4*p)}, {p4(a) if i >= 8 else (p4(48) if cfg.get("x_c") else 0)}', 1 if g == 3 and i % 2 == 1 else 0)
                if g == 0 and i % 2 == 0: S.m[-1].also = [('a', A2_W + ((i+1) % 8)*4 + 3), ('a', x + 12)]
            if i + 5 < len(B):
                Q = B[i+5][0] >> 1
                if Q not in opened:
                    opened.add(Q); bar[Q] = i
                    S.pre[g0].append(I('s_barrier', need=[('W', 2*Q), ('W', 2*Q+1)])); S.res[g0-1] += 2
                    S.pre[g0] += [I(x) for g in self.stamp_items('g2') for x in g]
                for q, r in enumerate(self.w_reads(i+5)): S.put(g0+q, r)
            if i >= PB[0] and (i - PB[0]) % 8 == 0: S.pre[g0] += [I(x) for g in self.stamp_items('tail') for x in g]
        used = set()
        def vput(i, it):
            assert i not in used; used.add(i)
            it = [x if isinstance(x, I) else I(x) for x in it]
            iv = [x.kind for x in it].index('vm')
            for q, x in enumerate(it): S.put(4*i + 2 - iv + q, x)
        for s in range(33):
            for p in range(4): vput(8*s + 2*p, self.a_load(s+3, p))
        prev = -1
        for S_ in range(npre, 22):
            for n in range(4):
                i = 1 + 2*n if S_ == 3 else 8*(2*S_ - lead + (n >> 1)) + 5 + 2*(n & 1)
                if S_ >= 18 and lead < 9: i -= 4*min(2, S_ - 17)
                i = max(i, prev + 1)
                while i in used: i += 1
                prev = i
                assert S_ < 8 or i > bar[(S_ >> 1) - 2], (S_, n)
                assert i + 12 < bar[S_ >> 1]
                vput(i, self.w_dma(S_, n))
        S.place([f'v_accvgpr_read_b32 v{self.DK+2}, a{A_DK}', f'v_accvgpr_read_b32 v{self.DK+3}, a{A_DK+1}'], pos(0), pos(0, 3))
        S.place([f'v_add_u32 v{V2_RDH+k}, 65536, v{V2_RD+k}' for k in range(8)] + [f'v_add_u32 v{V2_RCH+k}, 65536, v{V2_RC+k}' for k in range(2)], pos(2), pos(3, 2))
        S.place(self.flag(1, ('L2', 0)), pos(2, 4), pos(3))
        he = cfg.get('he', 10)
        c2, pend = self.ssm_part2c()
        S.place(c2, pos(0), pos(he))
        vput(8*he + 1, [pend[0]]); vput(8*he + 9, [pend[1]])
        S.place(self.flag(2, ('L3', 0)), pos(he + 3, 2), pos(he + 3, 5))
        self.vpf = 51; self.vpd = 50
        S.place(self.code_pf(65536, S_T1), pos(26), pos(27))
        vput(8*10 + 3, self.poll(1, 49).split('\n'))
        S.place(self.guard(self.poll(1, 49), 'v_cmp_eq_u32 vcc, -1, v49'), pos(12, 6), pos(13))
        t0 = he + cfg.get('hgap', 8)
        vput(8*(t0 - 2) + 1, self.poll(2, 49).split('\n'))
        S.place(self.guard(self.poll(2, 49), 'v_cmp_eq_u32 vcc, -1, v49'), pos(t0 - 1, 6), pos(t0))
        S.place([f's_add_u32 s{S_LX}, s{S_KA}, {(35-16)*4096}'], pos(13), pos(13, 5))
        S.place([[f's_bitcmp1_b32 s{S_W}, 0', f's_cselect_b64 {s2_(SRD_W)}, {s2_(P_CIM)}, {s2_(P_CRE)}'], f's_mov_b32 s{SRD_W+2}, 2097152',
                 f's_mul_i32 s{S_DA}, s{S_KQ}, {65536 + 512}', f's_lshr_b32 s{S_T1}, s{S_W}, 1', f's_lshl_b32 s{S_T1}, s{S_T1}, 7', f's_add_u32 s{S_DA}, s{S_DA}, s{S_T1}', f's_add_u32 s{S_DA}, s{S_DA}, 256'], pos(23), pos(24))
        tl = [self.a_load(s, p) for s in range(36, 44) for p in range(4)]
        late = [i for i in range(8*33, PB[0] + 2) if i not in used][-cfg.get('nlate', 16):]
        vs = [i for i in range(8*t0, late[0]) if i not in used]; n1 = 32 - len(late)
        for x, i in zip(tl, [vs[(q*len(vs))//n1] for q in range(n1)] + late): vput(i, x)
        pa, pb, pc, pd = self.final_prep()
        S.place(pa, pos(28), pos(30)); S.place(pc, pos(30), pos(34))
        fr = [i for i in range(PB[0] + 2, PB[1] + 2) if i not in used]; assert len(fr) >= len(pb)
        for x, i in zip(pb, fr): vput(i, x)
        for q in range(3): S.place(self.send(q), 4*PB[q+1] + 5, 4*PB[q+1] + 32, dense=True)
        f1, f2, f3 = cfg.get('xf', (2, 0, 15)); assert f3 >= 8
        S.place(self.xflag(1), 4*(PB[2] + f1), 4*(PB[2] + f1 + 2)); S.place(self.xflag(2), 4*(PB[3] + f2), 4*(PB[3] + f2 + 2))
        self.f3in = PB[3] + f3 + 2 <= len(B)
        if self.f3in: S.place(self.xflag(3), 4*(PB[3] + f3), 4*(PB[3] + f3 + 2))
        p0, p1, p2_ = cfg.get('pp', (11, 18, 23))
        vput(PB[3] + p0, [f'buffer_load_dword v50, v47, {WSR}, 0 offen sc1'])
        vput(PB[3] + p2_, [f'buffer_load_dword v51, v47, {WSR}, 0 offen sc1'])
        S.place([f'v_cmp_eq_u32 {s2_(S_MK)}, -1, v50'] + [x for o in (1, 2, 3) for x in self.recv(o, True)], 4*(PB[3] + p1), 4*len(B), dense=True)
        S.place(pd, 4*(PB[1] + 2), 4*len(B))
        S.emit(self.P)

    RES, XR, SR, DK, SEL = 64, 96, 112, 24, 28
    def final_prep(self):
        RES, XR, SR, DK, SEL = self.RES, self.XR, self.SR, self.DK, self.SEL
        a = [self.srd(SRD_OUT, P_OUT, 8388608),
             f's_lshl_b32 s{S_T1}, s{S_R2}, 6', f'v_lshrrev_b32 v34, 3, v{L}', f'v_add_u32 v34, s{S_T1}, v34',
             f's_lshl_b32 s{S_T1}, s{S_N2}, 2', f's_add_u32 s{S_T1}, s{S_T1}, s{S_KQ}', f's_lshl_b32 s{S_T1}, s{S_T1}, 6', f'v_and_b32 v35, 7, v{L}', f'v_lshl_add_u32 v35, v35, 3, s{S_T1}',
             'v_lshl_add_u32 v36, v34, 11, v35', 'v_lshlrev_b32 v37, 1, v36', 'v_lshlrev_b32 v34, 3, v34', f's_mov_b32 s{S_T3}, {WS_STATS}']
        b = []
        for n in range(8):
            b += [[f'buffer_load_dwordx2 {p2(SR+2*n)}, v34, {WSR}, s{S_T3} offen offset:{64*n} sc1']]
            a += [f'v_accvgpr_read_b32 v{XR+2*n}, a{A_XR+2*n}', f'v_accvgpr_read_b32 v{XR+2*n+1}, a{A_XR+2*n+1}']
        d = [f'v_lshlrev_b32 v{DK}, 16, v{DK+2}', f'v_and_b32 v{DK+1}, 0xffff0000, v{DK+2}', f'v_lshlrev_b32 v{DK+2}, 16, v{DK+3}', f'v_and_b32 v{DK+3}, 0xffff0000, v{DK+3}']
        for n in range(8):
            d.append(f'v_rcp_f32 v{SR+2*n+1}, v{SR+2*n+1}')
            for q in range(4):
                r = RES + 4*n + q
                d += [f'v_lshlrev_b32 v{r}, 16, v{XR+2*n+(q>>1)}' if q % 2 == 0 else f'v_and_b32 v{r}, 0xffff0000, v{XR+2*n+(q>>1)}',
                      f'v_add_f32 v38, v{r}, v{SR+2*n}', f'v_mul_f32 v39, v{SR+2*n+1}, v{DK+q}', f'v_fmac_f32 v{r}, v38, v39']
        c = [f'v_mov_b32 v{SEL}, 0', f'v_mov_b32 v{SEL+1}, 0', f'v_mov_b32 v{SEL+4}, 0', f'v_mov_b32 v{SEL+5}, 0',
             f'v_and_b32 v40, 1, v{L}', 'v_lshlrev_b32 v40, 4, v40', 'v_mov_b32 v41, 0x3f80', 'v_lshlrev_b32 v40, v40, v41',
             f'v_bfe_u32 v41, v{L}, 1, 3', f'v_lshrrev_b32 v42, 4, v{L}', 'v_lshlrev_b32 v42, 1, v42', 'v_xor_b32 v41, v41, v42',
             f'v_cmp_eq_u32 {s2_(S_MK)}, 0, v41', f'v_cmp_eq_u32 {s2_(S_MK+2)}, 1, v41',
             f'v_cndmask_b32 v{SEL+2}, 0, v40, {s2_(S_MK)}', f'v_cndmask_b32 v{SEL+3}, 0, v40, {s2_(S_MK+2)}',
             f's_lshl_b32 s{S_T1}, s{S_W}, 13', f's_add_u32 s{S_T1}, s{S_T1}, 98304',
             f'v_and_b32 v41, 15, v{L}', f'v_lshrrev_b32 v42, 4, v{L}', f'v_and_b32 v43, 7, v{L}', 'v_xor_b32 v42, v42, v43', 'v_lshlrev_b32 v42, 4, v42',
             'v_lshl_add_u32 v41, v41, 9, v42', f'v_add_u32 v41, s{S_T1}, v41', 'v_xor_b32 v42, 64, v41',
             f'v_lshrrev_b32 v43, 5, v{L}', f'v_xor_b32 v43, v43, v{L}', 'v_lshlrev_b32 v43, 4, v43', f'v_add_u32 v43, s{S_T1}, v43'] + \
            [f'v_xor_b32 v{43+q}, {32*q}, v43' for q in range(1, 4)] + \
            [f's_mul_i32 s{S_U0}, s{S_GW}, {3*4096}', f's_add_u32 s{S_U0}, s{S_U0}, {WS_XCH}',
             f'v_lshrrev_b32 v40, 4, v{L}', 'v_max_u32 v40, 1, v40', f'v_mul_u32_u24 v47, {1024 + (1 << 17)}, v40', f'v_xor_b32 v47, s{S_FL}, v47', f'v_add_u32 v47, {4 << 17}, v47']
        return a, b, c, d
    def spin(self, load, check, sure=True):
        l, d = self.lab('spin'), self.lab('done'); w = 's_waitcnt vmcnt(0)' + ('' if sure else ' ; maybe')
        self.e(f's_mov_b32 s{S_CNT}, {SPIN_MAX}\n{l}:\n{load}\ns_sub_u32 s{S_CNT}, s{S_CNT}, 1\n{w}\ns_cbranch_scc1 {d}\n{check}\ns_cbranch_vccnz {l}\n{d}:')
    def final(self):
        e = self.e; RES, SEL = self.RES, self.SEL
        def add(o):
            for tb in range(4):
                for hb in range(2):
                    a = p4(acc2(tb, hb)); e(f'v_mfma_f32_16x16x32_bf16 {a}, {p4(SEL+2-2*hb)}, {p4(acc2(tb, 2*o+1))}, {a}')
        self.stamp('tail')
        if not self.f3in: self.flat(self.xflag(3))
        self.stamp(); self.stamp('tail')
        add(1); add(2); add(3)
        self.stamp('tail')
        dn, lp = self.lab('dn'), self.lab('lp'); PE, NW = s2_(S_MK), s2_(S_MK+2)
        e(f's_and_b32 s{S_MK}, s{S_MK}, 0x10000\ns_and_b32 s{S_MK+1}, s{S_MK+1}, 0x10001\ns_mov_b32 s{S_CNT}, {SPIN_MAX}')
        e(f's_cmp_eq_u64 {PE}, 0\ns_cbranch_scc1 {dn}\ns_waitcnt vmcnt(0) ; maybe\n{lp}:')
        px = I('v_cmp_eq_u32 vcc, -1, v51'); px.uses = []; self.P.add([px])
        e(f's_andn2_b64 {NW}, {PE}, vcc\ns_and_b64 {PE}, {PE}, vcc')
        for o in (1, 2, 3):
            sk = self.lab('sk')
            e(f's_bitcmp0_b64 {NW}, {16*o}\ns_cbranch_scc1 {sk}')
            for x in self.recv(o): e(x + (' ; nocount' if x.startswith('buffer') else ''))
            e(f'{sk}:')
        e(f'buffer_load_dword v51, v47, {WSR}, 0 offen sc1\ns_waitcnt vmcnt(0) ; maybe')
        for o in (1, 2, 3):
            sk = self.lab('sk')
            e(f's_bitcmp0_b64 {NW}, {16*o}\ns_cbranch_scc1 {sk}'); add(o); e(f'{sk}:')
        e(f's_sub_u32 s{S_CNT}, s{S_CNT}, 1\ns_cbranch_scc1 {dn}\ns_cmp_lg_u64 {PE}, 0\ns_cbranch_scc1 {lp}')
        e(f'{dn}:\ns_nop 7')
        self.stamp(); self.stamp('tail')
        for tb in range(4):
            for hb in range(2): e(f'ds_write_b128 v{41+hb}, {p4(acc2(tb, hb))} offset:{tb*128}')
        O = lambda n: acc2(n >> 1, 2 + 2*(n & 1))
        for n in range(8): e(f'ds_read_b128 {p4(O(n))}, v{43+(n&3)} offset:{n*1024}')
        for n in range(8):
            a = O(n)
            e(f'v_pk_add_f32 {p2(a)}, {p2(a)}, {p2(RES+4*n)}\nv_pk_add_f32 {p2(a+2)}, {p2(a+2)}, {p2(RES+4*n+2)}')
            e(f's_mov_b32 s{S_T1}, {n*8*4096}\nbuffer_store_dwordx4 {p4(a)}, v37, {s4(SRD_OUT)}, s{S_T1} offen {self.cfg.get("opol", "sc1 nt")}')

    def build(self, fname):
        global WS_XCH
        e = self.e; cfg = self.cfg
        WS_XCH = cfg.get('xch', 32) << 20
        self.B = self.g2_blocks()
        e('s_cmp_ge_u32 s2, 256\ns_cbranch_scc1 L_end')
        self.stamp(); self.prologue(); self.stamp(); self.stamp('g1')
        self.g1(); self.stamp(); self.stamp('epi')
        dm = [self.w_dma(S, n) for S in range(3, cfg.get('npre', 8)) for n in range(4)]
        blk = lambda b: self.rec(lambda: self.ffn_block(b))
        def late():
            o = self.late; self.late = []; return o
        self.weave(blk(0) + blk(1), dm[:12]); self.stamp('epi')
        l1 = late(); b23 = blk(2) + blk(3); l3 = late()
        self.weave(b23, l1 + l3[:1])
        self.stamp(); self.stamp('epi')
        self.weave(self.rec(self.ssm_part1), l3[1:], 0.0, 0.6)
        self.stamp(); self.stamp('epi')
        self.weave(blk(4), [self.flag(0, ('L1', 0))] + dm[12:], cfg.get('f1', 0.2), 1.0 if dm[12:] else cfg.get('f1', 0.2)); self.stamp('epi')
        ldf = self.poll(0, 15)
        self.weave(blk(5), self.ldag.split('\n'), 0.4, 1.0); self.stamp('epi')
        la = late(); b6 = blk(6); la += late()
        self.weave(b6, [ldf] + la[:2], 0.1, 1.0)
        self.stamp(); self.stamp('epi')
        self.flat(self.guard(ldf, 'v_cmp_eq_u32 vcc, -1, v15'))
        al = [self.a_load(s, p) for s in range(3) for p in range(4)]
        self.weave(self.rec(self.ssm_part2a), al[:6] + la[2:3]); self.stamp('epi')
        p2b = self.rec(self.ssm_part2b)
        self.weave(p2b[:40], al[6:9] + la[3:4])
        if cfg.get('x_c'):
            for k in range(4): e(f'v_mov_b32 v{48+k}, {fh(cfg["x_c"])}')
        self.flat(self.g2_rd_setup() + [I('s_barrier', need=[('W', 0), ('W', 1)])])
        rd = [self.w_reads(nb) for nb in range(5)]
        self.weave(p2b[40:], [rd[0], al[9], rd[1], la[4], rd[2], al[10], rd[3], la[5], rd[4], al[11]])
        self.stamp(); self.stamp('g2'); self.stamp('epi')
        self.g2(); self.stamp(); self.stamp('g2')
        self.final()
        if cfg.get('prof'):
            e('s_waitcnt vmcnt(0)'); self.stamp(); self.stamp('tail')
            e(f's_lshl_b32 s{S_T0}, s{S_GW}, 6\ns_add_u32 s{S_T0}, s{S_T0}, {WS_STAMP}')
            e('v_mov_b32 v19, 0\ns_mov_b64 exec, 1')
            for i in range(4): e(f'buffer_store_dwordx4 {a4(240+4*i)}, v19, {WSR}, s{S_T0} offen offset:{16*i}')
        if cfg.get('probe') is not None:
            k = cfg['probe']
            if k < 0:
                k = 0
                e(f's_mov_b64 exec, 1\nv_accvgpr_read_b32 v20, a224\nv_not_b32 v21, v20\nv_mov_b32 v22, 32\nglobal_atomic_umax v22, v21, {s2_(P_DBG)} sc1')
                e('v_readfirstlane_b32 s60, v20\ns_add_u32 s60, s60, 8000')
                e('L_probe0:\ns_sleep 2\ns_memrealtime s[96:97]\ns_waitcnt lgkmcnt(0)\ns_sub_u32 s61, s60, s96\ns_cmp_gt_i32 s61, 0\ns_cbranch_scc1 L_probe0')
                e(f'global_load_dword v21, v22, {s2_(P_DBG)} sc1\nv_not_b32 v21, v21\nv_accvgpr_write_b32 a224, v21')
            e(f's_mov_b64 exec, -1\nv_accvgpr_read_b32 v20, a{224+k}\nv_readfirstlane_b32 s60, v20\ns_add_u32 s60, s60, 10000')
            e('L_probe:\ns_sleep 2\ns_memrealtime s[96:97]\ns_waitcnt lgkmcnt(0)\ns_sub_u32 s61, s60, s96\ns_cmp_gt_i32 s61, 0\ns_cbranch_scc1 L_probe')
        e('L_end:\ns_endpgm')
        for x in self.slow: e(x)
        e('L_codeend:')
        K = NAME + '_kernel'
        lines = self.P.lines()
        def chain(n):
            self.npages = n; t = [None]*n
            for b, hops in self.batches.items():
                for p in range(4*b, min(n, 4*(b+hops))): t[p] = f'L_pg{p+4}' if p + 4 < min(n, 4*(b+hops)) else f'L_ret{b}'
            return t
        lines, size = layout(lines, 'L_main', chain, cfg.get('align', 1))
        for b in self.batches:
            for p in range(max(self.npages, 4*b), 4*b+4): lines = [l.replace(f'L_pg{p}', f'L_ret{b}') for l in lines]
            pg = [k for k, l in enumerate(lines) if l.startswith(f'L_pg{4*b}:')]
            assert lines.index(f'L_ret{b}:') < pg[0], b
        print(fname, 'main code bytes', size, 'pages', self.npages)
        txt = header([f'; @launch grid=(256,1,1) block=(256,1,1) lds={LDS_TOTAL}']) + kstart(K) + '\n'.join(lines) + '\n' + RODATA + kdesc(K, 512, 256)
        open(fname, 'w').write(txt)

if __name__ == '__main__':
    import json
    for a in sys.argv[1:]:
        name, _, c = a.partition('=')
        Gen(json.loads(c) if c else {}).build(name)
```
